```python
import torch

def _softmax(x, axis=-1):
    return torch.softmax(x, dim=axis)

def _gelu(x):
    return torch.nn.functional.gelu(x, approximate='tanh')

def _silu(x):
    return torch.nn.functional.silu(x)

def _sigmoid(x):
    return torch.sigmoid(x)

def _layernorm(x, axis=-1, eps=1e-05):
    m = x.mean(dim=axis, keepdim=True)
    v = x.var(dim=axis, keepdim=True, unbiased=False)
    return (x - m) / torch.sqrt(v + eps)

def _scatter_add(tgt, idx, src, axis=0):
    return tgt.clone().index_add_(axis, idx, src)

def _segment_sum(src, seg, n):
    out = torch.zeros((n,) + src.shape[1:], dtype=src.dtype)
    return out.index_add_(0, seg, src)

def _pad(x, pw):
    flat = tuple((v for pair in reversed(pw) for v in pair))
    return torch.nn.functional.pad(x, flat)
kernel_name = 'adaLN_cond__memory_aug_recurrent_mem_tr__glu_gated_swiglu__prompt'

def setup_inputs():

    _w = lambda a: (lambda t: t.to(torch.bfloat16) if t.is_floating_point() else t)(torch.as_tensor(a))

    def _A_setup():
        B, S, Dm = (1, 2048, 640)
        H, Dh = (32, 192)
        M, seg = (8, 32)
        seg = min(seg, S)
        S = S // seg * seg
        return {'x': _w((lambda *s: torch.randn(*s, dtype=torch.bfloat16) * 0.05)(B, S, Dm)), 'mem0': _w((lambda *s: torch.randn(*s, dtype=torch.bfloat16) * 0.8)(B, M, Dm)), 'Wq': _w((lambda *s: torch.randn(*s, dtype=torch.bfloat16) * 0.8)(Dm, H, Dh) * Dm ** (-0.5)), 'Wk': _w((lambda *s: torch.randn(*s, dtype=torch.bfloat16) * 0.8)(Dm, H, Dh) * Dm ** (-0.5)), 'Wv': _w((lambda *s: torch.randn(*s, dtype=torch.bfloat16) * 0.8)(Dm, H, Dh) * Dm ** (-0.5)), 'Wo': _w((lambda *s: torch.randn(*s, dtype=torch.bfloat16) * 0.8)(H, Dh, Dm) * (H * Dh) ** (-0.5)), 'seg_len': seg}
    _A_in = _A_setup()

    def _B_setup():
        B, S, D, F = (1, 2048, 640, 1536)
        return {'x': _w((lambda *s: torch.randn(*s, dtype=torch.bfloat16) * 0.05)(B, S, D)), 'w1': _w((lambda *s: torch.randn(*s, dtype=torch.bfloat16) * 0.4)(D, F) * (2.0 / D) ** 0.5), 'w3': _w((lambda *s: torch.randn(*s, dtype=torch.bfloat16) * 0.4)(D, F) * (2.0 / D) ** 0.5), 'w2': _w((lambda *s: torch.randn(*s, dtype=torch.bfloat16) * 0.4)(F, D) * (2.0 / F) ** 0.5)}
    _B_in = _B_setup()
    return {'A_x': _A_in['x'], 'A_mem0': _A_in['mem0'], 'A_Wq': _A_in['Wq'], 'A_Wk': _A_in['Wk'], 'A_Wv': _A_in['Wv'], 'A_Wo': _A_in['Wo'], 'A_seg_len': _A_in['seg_len'], 'B_x': _B_in['x'], 'B_w1': _B_in['w1'], 'B_w3': _B_in['w3'], 'B_w2': _B_in['w2'], 'c': _w((lambda *s: torch.randn(*s, dtype=torch.bfloat16) * 0.1)(1, 640) * 8.0), 'w_mod': _w((lambda *s: torch.randn(*s, dtype=torch.bfloat16) * 0.1)(640, 6 * 640) * 640 ** (-0.5) * 8.0)}

def reference(A_x, A_mem0, A_Wq, A_Wk, A_Wv, A_Wo, A_seg_len, B_x, B_w1, B_w3, B_w2, c, w_mod):

    def _A_ref(x, mem0, Wq, Wk, Wv, Wo, seg_len):
        B, S, Dm = x.shape
        H, Dh = (Wq.shape[1], Wq.shape[2])
        M = mem0.shape[1]
        scale = Dh ** (-0.5)
        n_seg = S // seg_len
        L = M + seg_len
        idx = torch.arange(L)
        mask = (idx[:, None] < M) | (idx[:, None] >= idx[None, :])
        mem = mem0
        outs = []
        for s in range(n_seg):
            xs = x[:, s * seg_len:(s + 1) * seg_len, :].clone()
            h = torch.concatenate([mem, xs], axis=1)
            q = torch.einsum('btd,dhe->bhte', h, Wq)
            k = torch.einsum('btd,dhe->bhte', h, Wk)
            v = torch.einsum('btd,dhe->bhte', h, Wv)
            scores = torch.einsum('bhqe,bhke->bhqk', q, k) * scale
            scores = torch.where(mask[None, None], scores, -1000000000.0)
            p = _softmax(scores, axis=-1)
            o = torch.einsum('bhqk,bhke->bhqe', p, v)
            o = torch.einsum('bhte,hed->btd', o, Wo)
            mem = o[:, :M, :].clone()
            outs.append(o[:, M:, :])
        return torch.concatenate(outs, axis=1)

    def _B_ref(x, w1, w3, w2):
        gate = torch.einsum('bsd,df->bsf', x, w1)
        up = torch.einsum('bsd,df->bsf', x, w3)
        h = _silu(gate) * up
        out = torch.einsum('bsf,fd->bsd', h, w2)
        return out
    x = A_x
    mod = (_silu(c) @ w_mod).reshape(c.shape[0], 6, 1, -1)
    sa, ca, ga, sb, cb, gb = (mod[:, 0].clone(), mod[:, 1].clone(), mod[:, 2].clone(), mod[:, 3].clone(), mod[:, 4].clone(), mod[:, 5].clone())
    h = _layernorm(x, axis=-1) * (1 + ca) + sa
    x = x + ga * _A_ref(h, A_mem0, A_Wq, A_Wk, A_Wv, A_Wo, A_seg_len)
    h = _layernorm(x, axis=-1) * (1 + cb) + sb
    x = x + gb * _B_ref(h, B_w1, B_w3, B_w2)
    return x
```

```python
import re
_OFF = re.compile(r'offset:(-?(?:0x)?[0-9a-fA-F]+)')
class Kern:
    def __init__(self, name, vgpr=256, sgpr=102, accum=None, wg_y=False):
        self.name = name
        self.L = []
        self.vgpr = vgpr
        self.sgpr = sgpr
        self.accum = accum
        self.wg_y = wg_y
        self._lab = 0
    def __call__(self, s):
        for ln in s.strip('\n').split('\n'):
            ln = ln.strip()
            if ln:
                m = _OFF.search(ln)
                if m:
                    o = int(m.group(1), 0)
                    if ln.startswith('buffer_'): assert 0 <= o < 4096, ln
                    elif ln.startswith('global_'): assert -4096 <= o < 4096, ln
                    elif ln.startswith('ds_') and not ln.startswith('ds_swizzle'): assert 0 <= o < 65536, ln
                self.L.append('    ' + ln)
    def label(self, nm):
        self.L.append(f'{nm}:')
    def newlabel(self, base='L'):
        self._lab += 1
        return f'{self.name}_{base}{self._lab}'
    def comment(self, s):
        self.L.append('    ; ' + s)
    def nop(self, n):
        while n > 0:
            k = min(n, 16)
            self(f's_nop {k-1}')
            n -= k
    def text(self):
        out = []
        out.append('.text')
        out.append(f'.globl {self.name}')
        out.append('.p2align 8')
        out.append(f'.type {self.name},@function')
        out.append(f'{self.name}:')
        out += self.L
        out.append('    s_endpgm')
        return '\n'.join(out) + '\n'
    def desc(self):
        acc = self.accum if self.accum is not None else ((self.vgpr + 3)//4*4)
        o = []
        o.append('.p2align 6')
        o.append(f'.amdhsa_kernel {self.name}')
        o.append(f'  .amdhsa_next_free_vgpr {self.vgpr}')
        o.append(f'  .amdhsa_next_free_sgpr {self.sgpr}')
        o.append(f'  .amdhsa_accum_offset {acc}')
        o.append('  .amdhsa_group_segment_fixed_size 0')
        o.append('  .amdhsa_kernarg_size 128')
        o.append('  .amdhsa_user_sgpr_count 2')
        o.append('  .amdhsa_user_sgpr_kernarg_segment_ptr 1')
        o.append('  .amdhsa_system_sgpr_workgroup_id_x 1')
        if self.wg_y:
            o.append('  .amdhsa_system_sgpr_workgroup_id_y 1')
        o.append('  .amdhsa_float_denorm_mode_32 3')
        o.append('.end_amdhsa_kernel')
        return '\n'.join(o) + '\n'

def v(i, n=1):
    return f'v{i}' if n == 1 else f'v[{i}:{i+n-1}]'
def s(i, n=1):
    return f's{i}' if n == 1 else f's[{i}:{i+n-1}]'
def a(i, n=1):
    return f'a{i}' if n == 1 else f'a[{i}:{i+n-1}]'

ARG = dict(A_x=0, A_mem0=8, Wq=16, Wk=24, Wv=32, Wo=40, seg=48, B_x=56, w1=64, w3=72, w2=80, c=88, w_mod=96, out=104, dbg=112, ws=120)
SIZE = dict(A_x=2048*640*2, A_mem0=8*640*2, Wq=640*6144*2, Wk=640*6144*2, Wv=640*6144*2, Wo=6144*640*2,
            w1=640*1536*2, w3=640*1536*2, w2=1536*640*2, c=640*2, w_mod=640*3840*2, out=2048*640*2, dbg=256, ws=268435456)

def load_srd(k, name, sreg, tmp=None, off=0, size=None):
    k(f's_load_dwordx2 {s(sreg,2)}, s[0:1], {ARG[name]}')
    k('s_waitcnt lgkmcnt(0)')
    if off:
        k(f's_add_u32 {s(sreg)}, {s(sreg)}, {off & 0xffffffff}')
        k(f's_addc_u32 {s(sreg+1)}, {s(sreg+1)}, 0')
    k(f's_and_b32 {s(sreg+1)}, {s(sreg+1)}, 0xffff')
    sz = size if size is not None else SIZE[name] - off
    k(f's_mov_b32 {s(sreg+2)}, {sz}')
    k(f's_mov_b32 {s(sreg+3)}, 0x00020000')

def build_file(header_comment, launches, kerns):
    out = []
    out.append(header_comment.rstrip('\n'))
    for (kn, grid, block, lds) in launches:
        out.append(f'; @launch kernel={kn} grid=({grid[0]},{grid[1]},{grid[2]}) block=({block[0]},{block[1]},{block[2]}) lds={lds}')
    out.append('.amdgcn_target "amdgcn-amd-amdhsa--gfx950"')
    for kk in kerns:
        out.append(kk.text())
    out.append('.section .rodata,"a"')
    for kk in kerns:
        out.append(kk.desc())
    return '\n'.join(out)

_REG = re.compile(r'\b([vsa])(\d+)\b|\b([vsa])\[(\d+):(\d+)\]|\b(vcc|exec|m0)\b')
def _regs(tok):
    out = []
    for m in _REG.finditer(tok):
        if m.group(1): out.append((m.group(1), int(m.group(2))))
        elif m.group(3): out += [(m.group(3), i) for i in range(int(m.group(4)), int(m.group(5)) + 1)]
        else: out.append((m.group(6), 0))
    return out
_TRANS = ('v_exp_f32', 'v_log_f32', 'v_rcp_f32', 'v_rsq_f32', 'v_sqrt_f32', 'v_sin_f32', 'v_cos_f32')
def lint(k):
    ins = []
    for ln in k.L:
        t = ln.strip()
        if not t or t.startswith(';') or t.endswith(':'):
            continue
        t = t.split(';')[0].strip()
        op, _, rest = t.partition(' ')
        ops = [x.strip() for x in rest.split(',')] if rest else []
        ins.append((op, ops, t))
    probs = []
    pos = []; p = 0
    for op, ops, t in ins:
        pos.append(p)
        p += (int(ops[0], 0) + 1) if op == 's_nop' else 1
    def dsts_srcs(op, ops):
        if op.startswith(('buffer_store', 'global_store', 'ds_write', 'global_atomic', 'buffer_atomic', 's_cmp', 's_cbranch', 's_waitcnt', 's_nop', 's_barrier', 's_branch', 'global_load_lds', 's_sleep', 's_setprio')):
            return [], sum((_regs(o) for o in ops), [])
        if op.startswith('buffer_load') and 'lds' in ops[-1].split():
            return [], sum((_regs(o) for o in ops), [])
        if op.startswith('v_permlane') and 'swap' in op:
            r = sum((_regs(o) for o in ops), [])
            return r, r
        d = _regs(ops[0]) if ops else []
        sr = sum((_regs(o) for o in ops[1:]), [])
        if op.startswith(('v_add_co', 'v_addc_co', 'v_sub_co', 'v_subb_co')):
            d = d + _regs(ops[1]); sr = sum((_regs(o) for o in ops[2:]), [])
        if op.startswith(('v_fmac', 'v_mfma')) and op.startswith('v_fmac'):
            sr = sr + d
        if op.startswith('v_cndmask') and len(ops) == 3:
            sr = sr + [('vcc', 0)]
        if op.startswith('v_cmp') and ops[0] == 'vcc':
            d = [('vcc', 0)]
        return d, sr
    info = [dsts_srcs(op, ops) for op, ops, t in ins]
    n = len(ins)
    for i in range(n):
        op, ops, t = ins[i]
        d, sr = info[i]
        isvalu = op.startswith('v_') and not op.startswith('v_mfma')
        ismfma = op.startswith('v_mfma')
        for j in range(i + 1, min(n, i + 24)):
            op2, ops2, t2 = ins[j]
            d2, s2 = info[j]
            dist = pos[j] - pos[i] - 1
            if op2 == 's_branch' or op2 == 's_endpgm': break
            def hit(A, B): return bool(set(A) & set(B))
            need = 0; why = ''
            if isvalu:
                vd = [r for r in d if r[0] == 'v']
                sd = [r for r in d if r[0] in ('s', 'vcc')]
                if op2.startswith(('v_readfirstlane', 'v_readlane')) and hit(vd, s2): need, why = 1, 'valu->readlane'
                if op2.startswith('v_mfma') and hit(vd, s2): need, why = 2, 'valu->mfma'
                if op2.startswith('v_permlane') and hit(vd, s2): need, why = 2, 'valu->permlane'
                if ('row_' in t2 or 'quad_perm' in t2) and hit(vd, s2): need, why = 2, 'valu->dpp'
                if op in _TRANS and op2.startswith('v_') and op2 not in _TRANS and not op2.startswith('v_mfma') and hit(vd, s2): need, why = max(need, 1), 'trans->valu'
                if sd and op2.startswith(('buffer_', 'global_')) and hit(sd, s2): need, why = 5, 'valu sgpr->vmem'
                if sd and op2.startswith('v_') and hit(sd, s2): need, why = max(need, 2), 'valu sgpr->valu'
                if sd and op2.startswith(('v_readlane', 'v_writelane')) and hit(sd, s2): need, why = 4, 'valu sgpr->lane sel'
            if ismfma:
                passes = 8 if '32x32x16' in op else 4
                if op2.startswith('v_mfma'):
                    ab = _regs(ops2[1]) + _regs(ops2[2])
                    c2 = _regs(ops2[3])
                    if hit(d, ab): need, why = (12 if passes == 8 else 8), 'mfma->mfma AB'
                    elif hit(d, c2) and set(c2) != set(d): need, why = (10 if passes == 8 else 6), 'mfma->mfma C overlap'
                elif hit(d, s2) or hit(d, d2): need, why = (12 if passes == 8 else 8), 'mfma->other'
                elif op2.startswith('v_') and hit(_regs(ops[3]), d2): need, why = (7 if passes == 8 else 3), 'mfma C WAR'
            if op.startswith('s_') and ('m0', 0) in d and ('lds' in op2 or (op2.startswith('buffer_load') and 'lds' in t2)):
                need, why = 1, 'm0->ldsdma'
            if op.startswith(('buffer_store_dwordx4', 'global_store_dwordx4', 'buffer_store_dwordx3', 'global_store_dwordx3')):
                dat = _regs(ops[0]) if op.startswith('buffer') else _regs(ops[1])
                if op2.startswith('v_') and hit(dat, d2): need, why = 2, 'store x4 WAR'
            if need > dist:
                probs.append(f'{k.name}: [{why}] need {need} have {dist}: "{t}" -> "{t2}"')
    return probs
```

```python
from asmlib import *
from layout import WS
import struct
def f32hex(x):
    return '0x%08x' % struct.unpack('<I', struct.pack('<f', x))[0]
def round_bf16(k, vr):
    k(f'v_cvt_pk_bf16_f32 {v(vr)}, {v(vr)}, {v(vr)}')
    k(f'v_and_b32 {v(vr)}, 0xffff0000, {v(vr)}')

def attn_kernel():
    k = Kern('attn_kernel', vgpr=248, sgpr=64)
    done = k.newlabel('done')
    k('s_cmp_ge_u32 s2, 512')
    k(f's_cbranch_scc1 {done}')
    load_srd(k, 'ws', 4)
    k('v_and_b32 v1, 63, v0')
    k('v_lshrrev_b32 v2, 6, v0')
    k('v_and_b32 v3, 15, v1')
    k('v_lshrrev_b32 v4, 4, v1')
    k.nop(1)
    k('v_readfirstlane_b32 s25, v2')
    k.nop(4)
    k('s_lshr_b32 s20, s2, 3')
    k('s_and_b32 s21, s2, 7')
    k('s_lshl_b32 s21, s21, 2')
    k('s_add_u32 s21, s21, s25')
    QF, KF, ST, PF, VX, VM, OA = 16, 64, 136, 160, 176, 224, 16
    k('v_mul_u32_u24 v5, 12288, v3')
    k('s_mul_i32 s22, s21, 384')
    k('v_add_u32 v5, s22, v5')
    k('v_lshlrev_b32 v6, 4, v4')
    k('v_add_u32 v5, v5, v6')
    k('s_mul_i32 s23, s20, 32*12288')
    for t in range(2):
        k(f's_add_u32 s24, s23, {WS["Q"] + t*16*12288}')
        for kk in range(6):
            k(f'buffer_load_dwordx4 {v(QF + t*24 + kk*4, 4)}, v5, s[4:7], s24 offen offset:{kk*64}')
    for t in range(2):
        k(f's_add_u32 s24, s23, {WS["K"] + t*16*12288}')
        for kk in range(6):
            k(f'buffer_load_dwordx4 {v(KF + t*24 + kk*4, 4)}, v5, s[4:7], s24 offen offset:{kk*64}')
    k('v_and_b32 v7, 7, v3')
    k('v_mul_u32_u24 v7, 384, v7')
    k('v_add_u32 v7, v7, v6')
    k('s_lshl_b32 s24, s20, 5')
    k('s_add_u32 s24, s24, s21')
    k('s_mul_i32 s26, s24, 3072')
    k(f's_add_u32 s26, s26, {WS["KM"]}')
    for kk in range(6):
        k(f'buffer_load_dwordx4 {v(KF + 48 + kk*4, 4)}, v7, s[4:7], s26 offen offset:{kk*64}')
    k('v_lshlrev_b32 v8, 6, v3')
    k('v_lshlrev_b32 v9, 3, v4')
    k('v_add_u32 v8, v8, v9')
    k('s_mul_i32 s26, s24, 192*64')
    k(f's_add_u32 s26, s26, {WS["VT"]}')
    for et in range(12):
        k(f's_add_u32 s27, s26, {et*1024}')
        k(f'buffer_load_dwordx2 {v(VX+4*et,2)}, v8, s[4:7], s27 offen')
        k(f'buffer_load_dwordx2 {v(VX+4*et+2,2)}, v8, s[4:7], s27 offen offset:32')
    k('v_lshlrev_b32 v9, 4, v3')
    k('v_and_b32 v10, 1, v4')
    k('v_lshlrev_b32 v10, 3, v10')
    k('v_add_u32 v9, v9, v10')
    k('s_mul_i32 s26, s24, 192*16')
    k(f's_add_u32 s26, s26, {WS["VMT"]}')
    for et in range(12):
        k(f'buffer_load_dwordx2 {v(VM+2*et,2)}, v9, s[4:7], s26 offen offset:{et*256}')
    for i in range(24):
        k(f'v_mov_b32 {v(ST+i)}, 0')
    k('s_waitcnt vmcnt(36)')
    for kk in range(6):
        for kt in range(3):
            for qt in range(2):
                d = ST + (kt*2+qt)*4
                k(f'v_mfma_f32_16x16x32_bf16 {v(d,4)}, {v(KF+kt*24+kk*4,4)}, {v(QF+qt*24+kk*4,4)}, {v(d,4)}')
    k.nop(8)
    scale = 192 ** -0.5
    for i in range(24):
        round_bf16(k, ST+i)
        k(f'v_mul_f32 {v(ST+i)}, {f32hex(scale)}, {v(ST+i)}')
        round_bf16(k, ST+i)
    k(f'v_mov_b32 v11, {f32hex(-1e30)}')
    k('v_lshlrev_b32 v12, 2, v4')
    k('v_sub_u32 v12, v3, v12')
    for qt in range(2):
        for kt in range(2):
            for r in range(4):
                d = ST + (kt*2+qt)*4 + r
                thr = 16*(kt-qt) + r
                if thr <= -12:
                    continue
                if thr > 15:
                    k(f'v_mov_b32 {v(d)}, v11')
                    continue
                k(f'v_cmp_le_i32 vcc, {thr}, v12')
                k.nop(2)
                k(f'v_cndmask_b32 {v(d)}, v11, {v(d)}, vcc')
    k('v_cmp_gt_u32 vcc, 2, v4')
    k.nop(2)
    for qt in range(2):
        for r in range(4):
            d = ST + (4+qt)*4 + r
            k(f'v_cndmask_b32 {v(d)}, v11, {v(d)}, vcc')
    def xred(reg, tmp, ins):
        k(f'ds_swizzle_b32 {v(tmp)}, {v(reg)} offset:0x401F')
        k('s_waitcnt lgkmcnt(0)')
        k(f'{ins} {v(reg)}, {v(reg)}, {v(tmp)}')
        k(f'v_mov_b32 {v(tmp)}, {v(reg)}')
        k.nop(2)
        k(f'v_permlane32_swap_b32 {v(tmp)}, {v(reg)}')
        k.nop(1)
        k(f'{ins} {v(reg)}, {v(reg)}, {v(tmp)}')
    for qt in range(2):
        regs = [ST + (kt*2+qt)*4 + r for kt in range(3) for r in range(4)]
        k(f'v_max_f32 v13, {v(regs[0])}, {v(regs[1])}')
        for r in regs[2:]:
            k(f'v_max_f32 v13, v13, {v(r)}')
        xred(13, 14, 'v_max_f32')
        k('v_mov_b32 v15, 0')
        for r in regs:
            k(f'v_sub_f32 {v(r)}, {v(r)}, v13')
            k(f'v_mul_f32 {v(r)}, {f32hex(1.4426950408889634)}, {v(r)}')
            k(f'v_exp_f32 {v(r)}, {v(r)}')
        k.nop(1)
        for r in regs:
            k(f'v_add_f32 v15, v15, {v(r)}')
        xred(15, 14, 'v_add_f32')
        k('v_rcp_f32 v15, v15')
        k.nop(1)
        for r in regs:
            k(f'v_mul_f32 {v(r)}, {v(r)}, v15')
        for kt in range(3):
            d = ST + (kt*2+qt)*4
            k(f'v_cvt_pk_bf16_f32 {v(PF+8*qt+2*kt)}, {v(d)}, {v(d+1)}')
            k(f'v_cvt_pk_bf16_f32 {v(PF+8*qt+2*kt+1)}, {v(d+2)}, {v(d+3)}')
    for i in range(96):
        k(f'v_mov_b32 {v(OA+i)}, 0')
    k('s_waitcnt vmcnt(0)')
    k.nop(2)
    for et in range(12):
        for qt in range(2):
            d = OA + (et*2+qt)*4
            k(f'v_mfma_f32_16x16x32_bf16 {v(d,4)}, {v(VX+4*et,4)}, {v(PF+8*qt,4)}, {v(d,4)}')
    for et in range(12):
        for qt in range(2):
            d = OA + (et*2+qt)*4
            k(f'v_mfma_f32_16x16x16_bf16 {v(d,4)}, {v(VM+2*et,2)}, {v(PF+8*qt+4,2)}, {v(d,4)}')
    k.nop(10)
    k('v_mul_u32_u24 v5, 12288, v3')
    k('s_mul_i32 s22, s21, 384')
    k('v_add_u32 v5, s22, v5')
    k('v_lshlrev_b32 v6, 3, v4')
    k('v_add_u32 v5, v5, v6')
    for qt in range(2):
        k(f's_add_u32 s24, s23, {WS["O"] + qt*16*12288}')
        for et in range(12):
            d = OA + (et*2+qt)*4
            k(f'v_cvt_pk_bf16_f32 {v(PF)}, {v(d)}, {v(d+1)}')
            k(f'v_cvt_pk_bf16_f32 {v(PF+1)}, {v(d+2)}, {v(d+3)}')
            k(f'buffer_store_dwordx2 {v(PF,2)}, v5, s[4:7], s24 offen offset:{et*32}')
            k.nop(1)
    k.label(done)
    k.lds = 0
    k.grid = 512
    return k
```

```python
from asmlib import *
from layout import WS
import struct
def f32hex(x):
    return '0x%08x' % struct.unpack('<I', struct.pack('<f', x))[0]
def round_bf16(k, vr):
    k(f'v_cvt_pk_bf16_f32 {v(vr)}, {v(vr)}, {v(vr)}')
    k(f'v_and_b32 {v(vr)}, 0xffff0000, {v(vr)}')

SPIN_LIMIT = 400000
L_MEM = 0; MEM_STRIDE = 1296
L_RED = 10496
L_O = 20736; O_STRIDE = 400
LDS_BYTES = 98304

def chain_kernel(nsteps=64):
    k = Kern('chain_kernel', vgpr=256+148, sgpr=96, accum=256)
    done = k.newlabel('done')
    fail = k.newlabel('fail')
    k('s_cmp_ge_u32 s2, 256')
    k(f's_cbranch_scc1 {done}')
    k('s_and_b32 s22, s2, 7')
    k('s_lshr_b32 s23, s2, 3')
    k('s_lshr_b32 s20, s23, 3')
    k('s_lshl_b32 s24, s22, 2')
    k('s_add_u32 s20, s20, s24')
    k('s_and_b32 s21, s23, 7')
    load_srd(k, 'ws', 4)
    load_srd(k, 'dbg', 8)
    for i, nm in enumerate(('Wq', 'Wk', 'Wv')):
        k(f's_load_dwordx2 {s(26+2*i,2)}, s[0:1], {ARG[nm]}')
    k(f's_load_dwordx2 s[32:33], s[0:1], {ARG["Wo"]}')
    load_srd(k, 'A_mem0', 12)
    k('v_and_b32 v1, 63, v0')
    k('v_lshrrev_b32 v2, 6, v0')
    k('v_and_b32 v3, 15, v1')
    k('v_lshrrev_b32 v4, 4, v1')
    k.nop(1)
    k('v_readfirstlane_b32 s25, v2')
    k.nop(4)
    for i in range(148):
        k(f'v_accvgpr_write_b32 {a(i)}, 0')
    k('s_mul_i32 s34, s20, 192')
    k('s_mul_i32 s35, s21, 24')
    k('s_add_u32 s34, s34, s35')
    k('v_mul_u32_u24 v5, 160, v2')
    k('v_lshlrev_b32 v6, 3, v4')
    k('v_add_u32 v5, v5, v6')
    k('s_movk_i32 s35, 12288')
    k('v_mul_lo_u32 v5, v5, s35')
    for nt in range(5):
        k(f'v_add_u32 v6, {nt*16}, v3')
        k('v_mov_b32 v8, s26'); k('v_mov_b32 v9, s27')
        k('v_cmp_le_u32 vcc, 24, v6')
        k('v_mov_b32 v10, s28'); k('v_mov_b32 v11, s29')
        k('v_subrev_u32 v7, 24, v6')
        k('v_cndmask_b32 v8, v8, v10, vcc')
        k('v_cndmask_b32 v9, v9, v11, vcc')
        k('v_cndmask_b32 v12, v6, v7, vcc')
        k('v_cmp_le_u32 vcc, 48, v6')
        k('v_mov_b32 v10, s30'); k('v_mov_b32 v11, s31')
        k('v_subrev_u32 v7, 48, v6')
        k('v_cndmask_b32 v8, v8, v10, vcc')
        k('v_cndmask_b32 v9, v9, v11, vcc')
        k('v_cndmask_b32 v12, v12, v7, vcc')
        k('v_add_u32 v12, s34, v12')
        k('v_lshlrev_b32 v12, 1, v12')
        k('v_add_u32 v12, v12, v5')
        k('v_mov_b32 v13, 0')
        k('v_lshl_add_u64 v[8:9], v[8:9], 0, v[12:13]')
        k('s_mov_b32 s38, 12288'); k('s_mov_b32 s39, 0')
        k(f's_mov_b32 s48, {12288*25}'); k('s_mov_b32 s49, 0')
        if nt == 4:
            k('v_cmp_gt_u32 vcc, 72, v6')
            k('s_and_saveexec_b64 s[36:37], vcc')
        for kk in range(5):
            for i in range(8):
                k(f'global_load_ushort {v(64 + kk*8 + i)}, v[8:9], off')
                k(f'v_lshl_add_u64 v[8:9], v[8:9], 0, {"s[38:39]" if i < 7 else "s[48:49]"}')
        k('s_waitcnt vmcnt(0)')
        for kk in range(5):
            for i in range(4):
                r = 64 + kk*8 + 2*i
                k(f'v_lshl_or_b32 {v(r)}, {v(r+1)}, 16, {v(r)}')
                k(f'v_accvgpr_write_b32 {a((kk*5 + nt)*4 + i)}, {v(r)}')
        if nt == 4:
            k('s_mov_b64 exec, s[36:37]')
    for slot in range(2):
        k('s_mul_i32 s34, s20, 192*640')
        k('s_mul_i32 s35, s21, 80')
        k('s_add_u32 s34, s34, s35')
        if slot == 0:
            k('s_lshl_b32 s35, s25, 4')
            k('s_add_u32 s34, s34, s35')
        else:
            k('s_add_u32 s34, s34, 64')
        k('v_mul_u32_u24 v6, 640*8, v4')
        k('v_add_u32 v6, v6, v3')
        k('v_add_u32 v6, s34, v6')
        k('v_lshlrev_b32 v6, 1, v6')
        for kk in range(6):
            for i in range(8):
                k(f'global_load_ushort {v(64 + kk*8 + i)}, v6, s[32:33]')
                step = 1280 if i < 7 else 1280*(32-7)
                k(f'v_add_u32 v6, {step}, v6')
        k('s_waitcnt vmcnt(0)')
        for kk in range(6):
            for i in range(4):
                r = 64 + kk*8 + 2*i
                k(f'v_lshl_or_b32 {v(r)}, {v(r+1)}, 16, {v(r)}')
                k(f'v_accvgpr_write_b32 {a(100 + slot*24 + kk*4 + i)}, {v(r)}')
    vMemRd, vRedWr, vRedRd, vPubQK, vPubV, vQf, vKx, vVx, vVm, vOwr, vOrd, vAtm, vFlg, vCtr, vAcc = 5, 6, 7, 8, 9, 10, 11, 12, 13, 14, 15, 16, 17, 18, 19
    vAccL = 20
    k('v_and_b32 v32, 7, v1')
    k(f'v_mul_u32_u24 {v(vMemRd)}, {MEM_STRIDE}, v32')
    k('v_mul_u32_u24 v33, 320, v2')
    k(f'v_add_u32 {v(vMemRd)}, {v(vMemRd)}, v33')
    k('v_lshlrev_b32 v33, 4, v4')
    k(f'v_add_u32 {v(vMemRd)}, {v(vMemRd)}, v33')
    k('v_lshlrev_b32 v33, 3, v2')
    k('v_add_u32 v33, v33, v32')
    k(f'v_mul_u32_u24 {v(vRedWr)}, 320, v33')
    k('v_lshlrev_b32 v33, 4, v4')
    k(f'v_add_u32 {v(vRedWr)}, {v(vRedWr)}, v33')
    k(f'v_add_u32 {v(vRedWr)}, {L_RED}, {v(vRedWr)}')
    k('v_mul_u32_u24 v33, 3277, v0')
    k('v_lshrrev_b32 v33, 16, v33')
    k('v_mul_u32_u24 v34, 20, v33')
    k('v_sub_u32 v34, v0, v34')
    k(f'v_mul_u32_u24 {v(vRedRd)}, 320, v33')
    k('v_lshlrev_b32 v35, 4, v34')
    k(f'v_add_u32 {v(vRedRd)}, {v(vRedRd)}, v35')
    k(f'v_add_u32 {v(vRedRd)}, {L_RED}, {v(vRedRd)}')
    k('s_lshl_b32 s34, s20, 3')
    k('v_add_u32 v35, s34, v33')
    k('v_mul_u32_u24 v35, 384, v35')
    k('s_mul_i32 s34, s21, 48')
    k('v_add_u32 v35, s34, v35')
    k('v_lshlrev_b32 v36, 3, v34')
    k('v_add_u32 v35, v35, v36')
    k(f'v_add_u32 v36, {WS["QM"]}, v35')
    k(f'v_add_u32 v37, {WS["KM"] - 48}, v35')
    k('v_cmp_le_u32 vcc, 6, v34')
    k.nop(2)
    k(f'v_cndmask_b32 {v(vPubQK)}, v36, v37, vcc')
    k('s_mul_i32 s34, s20, 192')
    k('s_mul_i32 s35, s21, 24')
    k('s_add_u32 s34, s34, s35')
    k('v_lshlrev_b32 v35, 2, v34')
    k('v_add_u32 v35, s34, v35')
    k('v_lshlrev_b32 v35, 4, v35')
    k('v_lshlrev_b32 v36, 1, v33')
    k('v_add_u32 v35, v35, v36')
    k(f'v_add_u32 {v(vPubV)}, {WS["VMT"] - 48*16}, v35')
    k('v_cmp_gt_u32 vcc, 160, v0')
    k('s_mov_b64 s[44:45], vcc')
    k('v_cmp_gt_u32 s[40:41], 12, v34')
    k('s_and_b64 s[40:41], s[40:41], s[44:45]')
    k('v_cmp_le_u32 s[42:43], 12, v34')
    k('s_and_b64 s[42:43], s[42:43], s[44:45]')
    k('v_cmp_gt_u32 s[46:47], 18, v34')
    k('s_and_b64 s[42:43], s[42:43], s[46:47]')
    k('s_lshl_b32 s34, s20, 3')
    k('v_add_u32 v35, s34, v32')
    k(f'v_mul_u32_u24 {v(vQf)}, 384, v35')
    k('v_lshlrev_b32 v35, 4, v4')
    k(f'v_add_u32 {v(vQf)}, {v(vQf)}, v35')
    k(f'v_mul_u32_u24 {v(vKx)}, 12288, v3')
    k('s_mul_i32 s34, s20, 384')
    k(f'v_add_u32 {v(vKx)}, s34, {v(vKx)}')
    k(f'v_add_u32 {v(vKx)}, {v(vKx)}, v35')
    k('s_mul_i32 s34, s20, 192')
    k('v_mul_u32_u24 v35, 48, v2')
    k('v_add_u32 v35, v35, v3')
    k('v_add_u32 v35, s34, v35')
    k(f'v_lshlrev_b32 {v(vVx)}, 6, v35')
    k('v_lshlrev_b32 v36, 3, v4')
    k(f'v_add_u32 {v(vVx)}, {v(vVx)}, v36')
    k(f'v_lshlrev_b32 {v(vVm)}, 4, v35')
    k('v_and_b32 v36, 1, v4')
    k('v_lshlrev_b32 v36, 3, v36')
    k(f'v_add_u32 {v(vVm)}, {v(vVm)}, v36')
    k(f'v_mul_u32_u24 {v(vOwr)}, {O_STRIDE}, v32')
    k('v_mul_u32_u24 v35, 96, v2')
    k(f'v_add_u32 {v(vOwr)}, {v(vOwr)}, v35')
    k('v_lshlrev_b32 v35, 3, v4')
    k(f'v_add_u32 {v(vOwr)}, {v(vOwr)}, v35')
    k(f'v_add_u32 {v(vOwr)}, {L_O}, {v(vOwr)}')
    k(f'v_mul_u32_u24 {v(vOrd)}, {O_STRIDE}, v32')
    k('v_lshlrev_b32 v35, 4, v4')
    k(f'v_add_u32 {v(vOrd)}, {v(vOrd)}, v35')
    k(f'v_add_u32 {v(vOrd)}, {L_O}, {v(vOrd)}')
    k(f'v_mul_u32_u24 {v(vAtm)}, 10240, v4')
    k('s_mul_i32 s34, s21, 80')
    k('v_lshlrev_b32 v35, 4, v2')
    k('v_add_u32 v35, v35, v3')
    k('v_add_u32 v35, s34, v35')
    k('v_lshlrev_b32 v35, 2, v35')
    k(f'v_add_u32 {v(vAtm)}, {v(vAtm)}, v35')
    k('s_lshl_b32 s34, s20, 3')
    k('v_add_u32 v35, s34, v32')
    k(f'v_lshlrev_b32 {v(vFlg)}, 2, v35')
    k(f'v_add_u32 {v(vFlg)}, {WS["CNT"]}, {v(vFlg)}')
    k(f'v_lshlrev_b32 {v(vCtr)}, 6, v32')
    k(f'v_add_u32 {v(vCtr)}, {WS["CNT"] + 65536}, {v(vCtr)}')
    k(f'v_lshlrev_b32 {v(vAcc)}, 4, v0')
    for i in range(5):
        k(f'v_add_u32 v35, {256*i}, v0')
        k('v_mul_u32_u24 v36, 52429, v35')
        k('v_lshrrev_b32 v36, 23, v36')
        k('v_mul_u32_u24 v37, 160, v36')
        k('v_sub_u32 v37, v35, v37')
        k(f'v_mul_u32_u24 {v(vAccL+i)}, {MEM_STRIDE}, v36')
        k('v_lshlrev_b32 v37, 3, v37')
        k(f'v_add_u32 {v(vAccL+i)}, {v(vAccL+i)}, v37')
    KX, VX, QF, KMF, VMF, ST, ACC1, MF, OACC, PF = 64, 112, 124, 148, 172, 184, 196, 216, 236, 248
    for i in range(3):
        k(f'v_mov_b32 {v(VMF+4*i+2)}, 0'); k(f'v_mov_b32 {v(VMF+4*i+3)}, 0')
    for i in range(3):
        k(f'v_add_u32 v35, {256*i}, v0')
        k('v_mul_u32_u24 v36, 52429, v35')
        k('v_lshrrev_b32 v36, 22, v36')
        k('v_mul_u32_u24 v37, 80, v36')
        k('v_sub_u32 v37, v35, v37')
        k(f'v_mul_u32_u24 v38, {MEM_STRIDE}, v36')
        k('v_lshlrev_b32 v37, 4, v37')
        k('v_add_u32 v38, v38, v37')
        k('v_lshlrev_b32 v39, 4, v35')
        k('v_cmp_gt_u32 vcc, 640, v35')
        k('s_and_saveexec_b64 s[36:37], vcc')
        k(f'buffer_load_dwordx4 v[40:43], v39, s[12:15], 0 offen')
        k('s_waitcnt vmcnt(0)')
        k('ds_write_b128 v38, v[40:43]')
        k('s_mov_b64 exec, s[36:37]')
    k('s_waitcnt vmcnt(0) lgkmcnt(0)')
    k('s_barrier')
    k('s_mov_b32 s50, 0')
    loop = k.newlabel('loop')
    k.label(loop)
    k('s_mul_i32 s51, s50, 98304')
    k('s_mul_i32 s52, s50, 32*12288')
    k(f's_add_u32 s52, s52, {WS["K"]}')
    k(f's_add_u32 s53, s52, {16*12288}')
    for kk in range(6):
        k(f'buffer_load_dwordx4 {v(KX+kk*4,4)}, {v(vKx)}, s[4:7], s52 offen offset:{kk*64}')
        k(f'buffer_load_dwordx4 {v(KX+24+kk*4,4)}, {v(vKx)}, s[4:7], s53 offen offset:{kk*64}')
    k('s_mul_i32 s52, s50, 32*192*64')
    k(f's_add_u32 s52, s52, {WS["VT"]}')
    for i in range(3):
        k(f'buffer_load_dwordx2 {v(VX+4*i,2)}, {v(vVx)}, s[4:7], s52 offen offset:{i*1024}')
        k(f'buffer_load_dwordx2 {v(VX+4*i+2,2)}, {v(vVx)}, s[4:7], s52 offen offset:{i*1024+32}')
    for kk in range(5):
        k(f'ds_read_b128 {v(MF+4*kk,4)}, {v(vMemRd)} offset:{kk*64}')
    for i in range(20):
        k(f'v_mov_b32 {v(ACC1+i)}, 0')
    k('s_waitcnt lgkmcnt(0)')
    k.nop(1)
    for kk in range(5):
        for nt in range(5):
            k(f'v_mfma_f32_16x16x32_bf16 {v(ACC1+4*nt,4)}, {a((kk*5+nt)*4,4)}, {v(MF+4*kk,4)}, {v(ACC1+4*nt,4)}')
    k.nop(8)
    for nt in range(5):
        k(f'ds_write_b128 {v(vRedWr)}, {v(ACC1+4*nt,4)} offset:{nt*64}')
    k('s_waitcnt lgkmcnt(0)')
    k('s_barrier')
    for w in range(4):
        k(f'ds_read_b128 {v(32+4*w,4)}, {v(vRedRd)} offset:{w*2560}')
    k('s_waitcnt lgkmcnt(0)')
    for r in range(4):
        k(f'v_add_f32 {v(32+r)}, {v(32+r)}, {v(36+r)}')
        k(f'v_add_f32 {v(40+r)}, {v(40+r)}, {v(44+r)}')
        k(f'v_add_f32 {v(32+r)}, {v(32+r)}, {v(40+r)}')
    k('v_cvt_pk_bf16_f32 v48, v32, v33')
    k('v_cvt_pk_bf16_f32 v49, v34, v35')
    k('s_mov_b64 exec, s[40:41]')
    k(f'buffer_store_dwordx2 v[48:49], {v(vPubQK)}, s[4:7], s51 offen sc1')
    k('s_mov_b64 exec, s[42:43]')
    k(f'buffer_store_short v48, {v(vPubV)}, s[4:7], s51 offen sc1')
    k(f'buffer_store_short_d16_hi v48, {v(vPubV)}, s[4:7], s51 offen offset:16 sc1')
    k(f'buffer_store_short v49, {v(vPubV)}, s[4:7], s51 offen offset:32 sc1')
    k(f'buffer_store_short_d16_hi v49, {v(vPubV)}, s[4:7], s51 offen offset:48 sc1')
    k('s_mov_b64 exec, -1')
    k('s_waitcnt vmcnt(0)')
    k('s_barrier')
    k(f's_cmp_eq_u32 s50, {nsteps-1}')
    k(f's_cbranch_scc1 {done}')
    k('s_lshl_b32 s52, s50, 10')
    skipf = k.newlabel('skipf')
    k('s_cmp_lg_u32 s25, 0')
    k(f's_cbranch_scc1 {skipf}')
    k('s_lshl_b32 s53, s20, 5')
    k('s_lshl_b32 s54, s21, 2')
    k('s_add_u32 s53, s53, s54')
    k(f's_add_u32 s53, s53, {WS["CNT"]}')
    k('v_mov_b32 v32, s53')
    k('v_mov_b32 v33, 1')
    k('s_mov_b64 exec, 1')
    k('buffer_store_dword v33, v32, s[4:7], s52 offen sc1')
    k('s_mov_b64 exec, -1')
    k.label(skipf)
    pl = k.newlabel('pollf'); pd = k.newlabel('pollfd')
    k('s_mov_b32 s55, 0')
    k.label(pl)
    k(f'buffer_load_dword v32, {v(vFlg)}, s[4:7], s52 offen sc1')
    k('s_waitcnt vmcnt(0)')
    k('v_cmp_ne_u32 vcc, 1, v32')
    k.nop(1)
    k(f's_cbranch_vccz {pd}')
    k('s_add_u32 s55, s55, 1')
    k(f's_cmp_lt_u32 s55, {SPIN_LIMIT}')
    k(f's_cbranch_scc1 {pl}')
    k('s_mov_b32 s56, 1')
    k(f's_branch {fail}')
    k.label(pd)
    k(f's_add_u32 s52, s51, {WS["QM"]}')
    k(f's_add_u32 s53, s51, {WS["KM"]}')
    k(f's_add_u32 s54, s51, {WS["VMT"]}')
    for kk in range(6):
        k(f'buffer_load_dwordx4 {v(QF+4*kk,4)}, {v(vQf)}, s[4:7], s52 offen offset:{kk*64} sc1')
        k(f'buffer_load_dwordx4 {v(KMF+4*kk,4)}, {v(vQf)}, s[4:7], s53 offen offset:{kk*64} sc1')
    for i in range(3):
        k(f'buffer_load_dwordx2 {v(VMF+4*i,2)}, {v(vVm)}, s[4:7], s54 offen offset:{i*256} sc1')
    for i in range(12):
        k(f'v_mov_b32 {v(ST+i)}, 0')
    for i in range(12):
        k(f'v_mov_b32 {v(OACC+i)}, 0')
    k('s_waitcnt vmcnt(0)')
    for kk in range(6):
        k(f'v_mfma_f32_16x16x32_bf16 {v(ST,4)}, {v(KX+kk*4,4)}, {v(QF+4*kk,4)}, {v(ST,4)}')
        k(f'v_mfma_f32_16x16x32_bf16 {v(ST+4,4)}, {v(KX+24+kk*4,4)}, {v(QF+4*kk,4)}, {v(ST+4,4)}')
        k(f'v_mfma_f32_16x16x32_bf16 {v(ST+8,4)}, {v(KMF+kk*4,4)}, {v(QF+4*kk,4)}, {v(ST+8,4)}')
    k.nop(8)
    scale = 192 ** -0.5
    for i in range(12):
        round_bf16(k, ST+i)
        k(f'v_mul_f32 {v(ST+i)}, {f32hex(scale)}, {v(ST+i)}')
        round_bf16(k, ST+i)
    k('v_cmp_gt_u32 vcc, 2, v4')
    k(f'v_mov_b32 v32, {f32hex(-1e30)}')
    k.nop(1)
    for r in range(4):
        k(f'v_cndmask_b32 {v(ST+8+r)}, v32, {v(ST+8+r)}, vcc')
    k(f'v_max_f32 v33, {v(ST)}, {v(ST+1)}')
    for i in range(2, 12):
        k(f'v_max_f32 v33, v33, {v(ST+i)}')
    def xred(reg, tmp, ins):
        k(f'ds_swizzle_b32 {v(tmp)}, {v(reg)} offset:0x401F')
        k('s_waitcnt lgkmcnt(0)')
        k(f'{ins} {v(reg)}, {v(reg)}, {v(tmp)}')
        k(f'v_mov_b32 {v(tmp)}, {v(reg)}')
        k.nop(2)
        k(f'v_permlane32_swap_b32 {v(tmp)}, {v(reg)}')
        k.nop(1)
        k(f'{ins} {v(reg)}, {v(reg)}, {v(tmp)}')
    xred(33, 34, 'v_max_f32')
    k('v_mov_b32 v35, 0')
    for i in range(12):
        k(f'v_sub_f32 {v(ST+i)}, {v(ST+i)}, v33')
        k(f'v_mul_f32 {v(ST+i)}, {f32hex(1.4426950408889634)}, {v(ST+i)}')
        k(f'v_exp_f32 {v(ST+i)}, {v(ST+i)}')
    k.nop(1)
    for i in range(12):
        k(f'v_add_f32 v35, v35, {v(ST+i)}')
    xred(35, 34, 'v_add_f32')
    k('v_rcp_f32 v35, v35')
    k.nop(1)
    for i in range(12):
        k(f'v_mul_f32 {v(ST+i)}, {v(ST+i)}, v35')
    k(f'v_cvt_pk_bf16_f32 {v(PF)}, {v(ST)}, {v(ST+1)}')
    k(f'v_cvt_pk_bf16_f32 {v(PF+1)}, {v(ST+2)}, {v(ST+3)}')
    k(f'v_cvt_pk_bf16_f32 {v(PF+2)}, {v(ST+4)}, {v(ST+5)}')
    k(f'v_cvt_pk_bf16_f32 {v(PF+3)}, {v(ST+6)}, {v(ST+7)}')
    k(f'v_cvt_pk_bf16_f32 {v(PF+4)}, {v(ST+8)}, {v(ST+9)}')
    k(f'v_cvt_pk_bf16_f32 {v(PF+5)}, {v(ST+10)}, {v(ST+11)}')
    k(f'v_mov_b32 {v(PF+6)}, 0')
    k(f'v_mov_b32 {v(PF+7)}, 0')
    k.nop(2)
    for i in range(3):
        k(f'v_mfma_f32_16x16x32_bf16 {v(OACC+4*i,4)}, {v(VX+4*i,4)}, {v(PF,4)}, {v(OACC+4*i,4)}')
        k(f'v_mfma_f32_16x16x32_bf16 {v(OACC+4*i,4)}, {v(VMF+4*i,4)}, {v(PF+4,4)}, {v(OACC+4*i,4)}')
    k.nop(8)
    for i in range(3):
        k(f'v_cvt_pk_bf16_f32 v32, {v(OACC+4*i)}, {v(OACC+4*i+1)}')
        k(f'v_cvt_pk_bf16_f32 v33, {v(OACC+4*i+2)}, {v(OACC+4*i+3)}')
        k(f'ds_write_b64 {v(vOwr)}, v[32:33] offset:{i*32}')
    k('s_waitcnt lgkmcnt(0)')
    k('s_barrier')
    for kk in range(6):
        k(f'ds_read_b128 {v(MF+4*kk,4)}, {v(vOrd)} offset:{kk*64}')
    for i in range(8):
        k(f'v_mov_b32 {v(ACC1+i)}, 0')
    k('s_waitcnt lgkmcnt(0)')
    k.nop(1)
    for kk in range(6):
        k(f'v_mfma_f32_16x16x32_bf16 {v(ACC1,4)}, {v(MF+4*kk,4)}, {a(100+kk*4,4)}, {v(ACC1,4)}')
        k(f'v_mfma_f32_16x16x32_bf16 {v(ACC1+4,4)}, {v(MF+4*kk,4)}, {a(124+kk*4,4)}, {v(ACC1+4,4)}')
    k.nop(8)
    k('s_mul_i32 s52, s50, 20480')
    k(f's_add_u32 s52, s52, {WS["ACC"]}')
    k('s_mov_b64 exec, 0xffffffff')
    for r in range(4):
        k(f's_add_u32 s53, s52, {r*2560}')
        k(f'buffer_atomic_add_f32 {v(ACC1+r)}, {v(vAtm)}, s[4:7], s53 offen')
    skb = k.newlabel('skipb')
    k('s_cmp_lg_u32 s25, 0')
    k(f's_cbranch_scc1 {skb}')
    for r in range(4):
        k(f's_add_u32 s53, s52, {r*2560 + 256}')
        k(f'buffer_atomic_add_f32 {v(ACC1+4+r)}, {v(vAtm)}, s[4:7], s53 offen')
    k.label(skb)
    k('s_mov_b64 exec, -1')
    k('s_waitcnt vmcnt(0)')
    k('s_barrier')
    k('s_lshl_b32 s53, s50, 9')
    skc = k.newlabel('skipc')
    k('s_cmp_lg_u32 s25, 0')
    k(f's_cbranch_scc1 {skc}')
    k('s_lshl_b32 s54, s22, 6')
    k(f's_add_u32 s54, s54, {WS["CNT"] + 65536}')
    k('v_mov_b32 v32, s54')
    k('v_mov_b32 v33, 1')
    k('s_mov_b64 exec, 1')
    k('buffer_atomic_add v33, v32, s[4:7], s53 offen sc1')
    k('s_mov_b64 exec, -1')
    k.label(skc)
    pl = k.newlabel('pollc'); pd = k.newlabel('pollcd')
    k('s_mov_b32 s55, 0')
    k.label(pl)
    k(f'buffer_load_dword v32, {v(vCtr)}, s[4:7], s53 offen sc1')
    k('s_waitcnt vmcnt(0)')
    k('v_cmp_ne_u32 vcc, 32, v32')
    k.nop(1)
    k(f's_cbranch_vccz {pd}')
    k('s_add_u32 s55, s55, 1')
    k(f's_cmp_lt_u32 s55, {SPIN_LIMIT}')
    k(f's_cbranch_scc1 {pl}')
    k('s_mov_b32 s56, 2')
    k(f's_branch {fail}')
    k.label(pd)
    for i in range(5):
        k(f's_add_u32 s53, s52, {i*4096}')
        k(f'buffer_load_dwordx4 {v(ACC1+4*i,4)}, {v(vAcc)}, s[4:7], s53 offen sc1')
    k('s_waitcnt vmcnt(0)')
    for i in range(5):
        k(f'v_cvt_pk_bf16_f32 v32, {v(ACC1+4*i)}, {v(ACC1+4*i+1)}')
        k(f'v_cvt_pk_bf16_f32 v33, {v(ACC1+4*i+2)}, {v(ACC1+4*i+3)}')
        k(f'ds_write_b64 {v(vAccL+i)}, v[32:33]')
    k('s_waitcnt lgkmcnt(0)')
    k('s_barrier')
    k('s_add_u32 s50, s50, 1')
    k(f's_branch {loop}')
    k.label(fail)
    k('v_mov_b32 v32, s56')
    k('v_mov_b32 v33, s50')
    k('v_mov_b32 v34, s2')
    k('v_mov_b32 v35, 0')
    k('s_mov_b64 exec, 1')
    k('buffer_store_dwordx3 v[32:34], v35, s[8:11], 0 offen')
    k.label(done)
    k.lds = LDS_BYTES
    k.grid = 256
    return k
```

```python
from asmlib import *
from layout import WS
import struct
def f32hex(x):
    return '0x%08x' % struct.unpack('<I', struct.pack('<f', x))[0]

def round_bf16(k, vr):
    k(f'v_cvt_pk_bf16_f32 {v(vr)}, {v(vr)}, {v(vr)}')
    k(f'v_and_b32 {v(vr)}, 0xffff0000, {v(vr)}')

def gemm_kernel(name, M, Ntiles, K, BM, A_off, lda, bsrc, epi, NBUF=3, tile_map='xcd'):
    BK = 64
    MT = BM // 64
    NT = 2
    nst = K // BK
    Mtiles = M // BM
    ntiles_total = Mtiles * Ntiles
    ABYTES = BM * 128
    BUFSZ = ABYTES + 16384
    NA = BM // 32
    ALT = 0
    while ALT + BUFSZ <= 65536: ALT += BUFSZ
    assert NBUF*BUFSZ - ALT <= 65536
    k = Kern(name, vgpr=136, sgpr=64)
    done = k.newlabel('done')
    k(f's_cmp_ge_u32 s2, {ntiles_total}')
    k(f's_cbranch_scc1 {done}')
    if tile_map == 'xcd' and Ntiles % 8 == 0:
        per = Ntiles // 8
        k('s_and_b32 s15, s2, 7')
        k('s_lshr_b32 s12, s2, 3')
        assert (Mtiles & (Mtiles - 1)) == 0
        sh = Mtiles.bit_length() - 1
        k(f's_and_b32 s13, s12, {Mtiles-1}')
        k(f's_lshr_b32 s14, s12, {sh}')
        k(f's_mul_i32 s15, s15, {per}')
        k('s_add_u32 s14, s14, s15')
    else:
        assert (Mtiles & (Mtiles - 1)) == 0
        sh = Mtiles.bit_length() - 1
        k(f's_and_b32 s13, s2, {Mtiles-1}')
        k(f's_lshr_b32 s14, s2, {sh}')
    k(f's_load_dwordx2 s[4:5], s[0:1], {ARG["ws"]}')
    k('s_waitcnt lgkmcnt(0)')
    k(f's_mul_i32 s12, s13, {BM*lda}')
    k(f's_add_u32 s4, s4, {A_off}')
    k('s_addc_u32 s5, s5, 0')
    k('s_add_u32 s4, s4, s12')
    k('s_addc_u32 s5, s5, 0')
    ldb, ffn_pair = bsrc(k)
    k('v_and_b32 v48, 63, v0')
    k('v_lshrrev_b32 v49, 6, v0')
    k.nop(2)
    k('v_readfirstlane_b32 s10, v49')
    k.nop(4)
    k('s_lshl_b32 s11, s10, 11')
    k(f's_mul_i32 s10, s10, {BM//4*128}')
    k('v_lshrrev_b32 v50, 3, v48')
    k('v_and_b32 v51, 7, v48')
    k('v_lshrrev_b32 v52, 4, v48')
    k(f's_mov_b32 s12, {lda}')
    for i in range(NA):
        r0 = 8*i
        k(f'v_mul_u32_u24 v53, {BM//4}, v49')
        k(f'v_add_u32 v53, {r0}, v53')
        k('v_add_u32 v53, v53, v50')
        k('v_lshrrev_b32 v54, 1, v53')
        k('v_and_b32 v54, 7, v54')
        k('v_xor_b32 v54, v54, v51')
        k('v_lshlrev_b32 v54, 4, v54')
        k(f'v_mul_lo_u32 {v(1+i)}, v53, s12')
        k(f'v_add_u32 {v(1+i)}, {v(1+i)}, v54')
    k('v_lshrrev_b32 v53, 2, v51')
    k('v_and_b32 v54, 1, v52')
    k('v_xor_b32 v53, v53, v54')
    k('v_lshlrev_b32 v53, 2, v53')
    k('v_and_b32 v54, 3, v51')
    k('v_or_b32 v53, v53, v54')
    k('v_lshlrev_b32 v53, 4, v53')
    k('v_lshlrev_b32 v54, 4, v49')
    k('v_add_u32 v54, v54, v50')
    k(f's_mov_b32 s12, {ldb}')
    k('v_mul_lo_u32 v5, v54, s12')
    k('v_add_u32 v5, v5, v53')
    k(f'v_add_u32 v6, {8*ldb}, v5')
    k('v_lshrrev_b32 v53, 1, v49')
    k('v_and_b32 v54, 1, v49')
    k(f'v_mul_u32_u24 v55, {BM//2}, v53')
    k('v_and_b32 v56, 31, v48')
    k('v_add_u32 v55, v55, v56')
    k('v_lshrrev_b32 v56, 1, v55')
    k('v_and_b32 v56, 7, v56')
    k('v_lshrrev_b32 v57, 5, v48')
    k('v_xor_b32 v56, v56, v57')
    k('v_lshlrev_b32 v56, 4, v56')
    k('v_lshlrev_b32 v55, 7, v55')
    k('v_add_u32 v8, v55, v56')
    for ks in range(1, 4):
        k(f'v_xor_b32 {v(8+ks)}, {ks*32}, v8')
    k('v_and_b32 v55, 15, v48')
    k('v_lshrrev_b32 v55, 2, v55')
    k('v_lshrrev_b32 v56, 5, v48')
    k('v_lshlrev_b32 v56, 3, v56')
    k('v_add_u32 v56, v56, v55')
    k('v_lshrrev_b32 v57, 1, v55')
    k('v_and_b32 v57, 1, v57')
    k('v_lshlrev_b32 v57, 6, v57')
    k('v_lshlrev_b32 v56, 7, v56')
    k('v_add_u32 v56, v56, v57')
    k('v_and_b32 v57, 1, v52')
    k('v_lshlrev_b32 v57, 5, v57')
    k('v_add_u32 v56, v56, v57')
    k('v_and_b32 v57, 3, v48')
    k('v_lshlrev_b32 v57, 3, v57')
    k('v_add_u32 v56, v56, v57')
    k(f'v_add_u32 v56, {ABYTES}, v56')
    if ffn_pair:
        k('v_lshlrev_b32 v57, 6, v54')
        k('v_xor_b32 v12, v56, v57')
        k('v_mov_b32 v13, v12')
        boff = [0, 8192]
    else:
        k('v_lshlrev_b32 v57, 13, v54')
        k('v_add_u32 v12, v56, v57')
        k('v_xor_b32 v13, 64, v12')
        boff = [0, 0]
    ACC = 64
    for i in range(6):
        k(f'v_add_u32 {v(128+i)}, {ALT}, {v(8+i)}')
    for i in range(MT*NT*16):
        k(f'v_mov_b32 {v(ACC+i)}, 0')
    FR = 16
    def afrag(st, mt): return FR + st*16 + mt*4
    def bfrag(st, nt): return FR + st*16 + 8 + nt*4

    def issue(stage_buf):
        base = stage_buf * BUFSZ
        for i in range(NA):
            k(f's_add_u32 m0, s10, {base + i*1024}')
            k.nop(1)
            k(f'global_load_lds_dwordx4 {v(1+i)}, s[4:5]')
        for st in range(2):
            for i in range(2):
                k(f's_add_u32 m0, s11, {base + ABYTES + st*8192 + i*1024}')
                k.nop(1)
                k(f'global_load_lds_dwordx4 {v(5+i)}, {s(6+2*st,2)}')
        k('s_add_u32 s4, s4, 128')
        k('s_addc_u32 s5, s5, 0')
        for st in range(2):
            k(f's_add_u32 {s(6+2*st)}, {s(6+2*st)}, {64*ldb}')
            k(f's_addc_u32 {s(7+2*st)}, {s(7+2*st)}, 0')
    NL = NA + 4

    def reads(buf, ks, st):
        base = buf * BUFSZ
        ra = 8
        if base >= ALT:
            base -= ALT; ra = 128
        for mt in range(MT):
            k(f'ds_read_b128 {v(afrag(st,mt),4)}, {v(ra+ks)} offset:{base + mt*4096}')
        for nt in range(NT):
            for j in range(2):
                k(f'ds_read_b64_tr_b16 {v(bfrag(st,nt)+2*j,2)}, {v(ra+4+nt)} offset:{base + boff[nt] + ks*2048 + j*512}')
    NR = MT + 2*NT
    swapped = epi['kind'] != 'vt'
    def mfmas(st):
        for mt in range(MT):
            for nt in range(NT):
                d = ACC + (mt*NT + nt)*16
                if swapped:
                    k(f'v_mfma_f32_32x32x16_bf16 {v(d,16)}, {v(bfrag(st,nt),4)}, {v(afrag(st,mt),4)}, {v(d,16)}')
                else:
                    k(f'v_mfma_f32_32x32x16_bf16 {v(d,16)}, {v(afrag(st,mt),4)}, {v(bfrag(st,nt),4)}, {v(d,16)}')

    def compute(buf):
        reads(buf, 0, 0)
        for ks in range(4):
            st = ks & 1
            if ks < 3:
                reads(buf, ks+1, st ^ 1)
                k(f's_waitcnt lgkmcnt({NR})')
            else:
                k('s_waitcnt lgkmcnt(0)')
            mfmas(st)

    def stage(t_buf, do_issue, outstanding_after):
        k(f's_waitcnt vmcnt({outstanding_after*NL})')
        k('s_barrier')
        if do_issue:
            issue((t_buf + NBUF - 1) % NBUF)
        compute(t_buf)

    npre = min(NBUF - 1, nst)
    for t in range(npre):
        issue(t)
    nsteady = nst - npre
    rem = nsteady % NBUF
    t = 0
    for _ in range(rem):
        stage(t % NBUF, True, NBUF - 2); t += 1
    nloops = nsteady // NBUF
    if nloops > 0:
        if nloops <= 2:
            for _ in range(nloops * NBUF):
                stage(t % NBUF, True, NBUF - 2); t += 1
        else:
            lp = k.newlabel('loop')
            k(f's_mov_b32 s12, {nloops}')
            k.label(lp)
            for q in range(NBUF):
                stage((t + q) % NBUF, True, NBUF - 2)
            k('s_sub_u32 s12, s12, 1')
            k('s_cmp_lg_u32 s12, 0')
            k(f's_cbranch_scc1 {lp}')
            t += nloops * NBUF
    while t < nst:
        stage(t % NBUF, False, nst - 1 - t); t += 1
    k.nop(16)
    k('v_and_b32 v48, 63, v0')
    k('v_lshrrev_b32 v49, 6, v0')
    k('v_lshrrev_b32 v53, 1, v49')
    k('v_and_b32 v54, 1, v49')
    k('v_and_b32 v55, 31, v48')
    k('v_lshrrev_b32 v56, 5, v48')
    kind = epi['kind']
    if kind == 'vt':
        load_srd(k, 'ws', 16, off=WS['VT'], size=2048*6144*2)
        k('s_lshl_b32 s12, s14, 7')
        k('v_lshlrev_b32 v57, 6, v54')
        k('v_add_u32 v57, v57, v55')
        k('v_add_u32 v57, s12, v57')
        k(f's_mul_i32 s12, s13, {BM//32}')
        k(f'v_mul_u32_u24 v58, {MT}, v53')
        k('v_add_u32 v58, s12, v58')
        k('s_movk_i32 s12, 6144')
        k('v_mul_lo_u32 v58, v58, s12')
        k('v_add_u32 v57, v57, v58')
        k('v_lshlrev_b32 v57, 6, v57')
        k('v_lshlrev_b32 v58, 3, v56')
        k('v_add_u32 v57, v57, v58')
        for mt in range(MT):
            for nt in range(NT):
                d = ACC + (mt*NT + nt)*16
                k(f's_mov_b32 s12, {mt*6144*64 + nt*32*64}')
                for g in range(4):
                    k(f'v_cvt_pk_bf16_f32 v60, {v(d+4*g)}, {v(d+4*g+1)}')
                    k(f'v_cvt_pk_bf16_f32 v61, {v(d+4*g+2)}, {v(d+4*g+3)}')
                    k(f'buffer_store_dwordx2 v[60:61], v57, s[16:19], s12 offen offset:{g*16}')
                    k.nop(1)
    else:
        ldc = epi['ldc']
        if kind in ('store', 'res'):
            if epi.get('dst_arg'):
                load_srd(k, epi['dst_arg'], 16)
            else:
                load_srd(k, 'ws', 16, off=epi['dst_off'], size=M*ldc)
            k(f's_mul_i32 s12, s13, {BM}')
            k(f'v_mul_u32_u24 v57, {BM//2}, v53')
            k('v_add_u32 v57, v57, v55')
            k('v_add_u32 v57, s12, v57')
            k(f's_mov_b32 s12, {ldc}')
            k('v_mul_lo_u32 v57, v57, s12')
            k('v_lshlrev_b32 v58, 6, v54')
            k('v_lshlrev_b32 v59, 2, v56')
            k('v_add_u32 v58, v58, v59')
            k('s_lshl_b32 s12, s14, 7')
            k('v_add_u32 v58, s12, v58')
            k('v_lshlrev_b32 v59, 1, v58')
            k('v_add_u32 v57, v57, v59')
            if 'colofs' in epi:
                pass
            if kind == 'store':
                for mt in range(MT):
                    for nt in range(NT):
                        d = ACC + (mt*NT + nt)*16
                        k(f's_mov_b32 s12, {mt*32*ldc + nt*64}')
                        for g in range(4):
                            k(f'v_cvt_pk_bf16_f32 v60, {v(d+4*g)}, {v(d+4*g+1)}')
                            k(f'v_cvt_pk_bf16_f32 v61, {v(d+4*g+2)}, {v(d+4*g+3)}')
                            k(f'buffer_store_dwordx2 v[60:61], v57, s[16:19], s12 offen offset:{g*16}')
                            k.nop(1)
            else:
                if epi.get('res_arg'):
                    load_srd(k, epi['res_arg'], 20)
                else:
                    load_srd(k, 'ws', 20, off=epi['res_off'], size=M*ldc)
                load_srd(k, 'ws', 24, off=WS['MOD'] + epi['gate_chunk']*2560, size=2560)
                k('v_lshlrev_b32 v59, 2, v58')
                for nt in range(NT):
                    for g in range(4):
                        k(f'buffer_load_dwordx4 {v(16+(nt*4+g)*4,4)}, v59, s[24:27], 0 offen offset:{nt*128 + g*32}')
                for mt in range(MT):
                    for nt in range(NT):
                        d = ACC + (mt*NT + nt)*16
                        k(f's_mov_b32 s12, {mt*32*ldc + nt*64}')
                        for g in range(4):
                            k(f'buffer_load_dwordx2 {v(4+2*g,2)}, v57, s[20:23], s12 offen offset:{g*16}')
                        k('s_waitcnt vmcnt(0)')
                        for g in range(4):
                            for r in range(4):
                                rr = d + 4*g + r
                                round_bf16(k, rr)
                                k(f'v_mul_f32 {v(rr)}, {v(rr)}, {v(16+(nt*4+g)*4+r)}')
                                round_bf16(k, rr)
                                if r % 2 == 0:
                                    k(f'v_lshlrev_b32 v62, 16, {v(4+2*g+r//2)}')
                                else:
                                    k(f'v_and_b32 v62, 0xffff0000, {v(4+2*g+r//2)}')
                                k(f'v_add_f32 {v(rr)}, {v(rr)}, v62')
                            k(f'v_cvt_pk_bf16_f32 v60, {v(d+4*g)}, {v(d+4*g+1)}')
                            k(f'v_cvt_pk_bf16_f32 v61, {v(d+4*g+2)}, {v(d+4*g+3)}')
                            k(f'buffer_store_dwordx2 v[60:61], v57, s[16:19], s12 offen offset:{g*16}')
                            k.nop(1)
        elif kind == 'swiglu':
            load_srd(k, 'ws', 16, off=epi['dst_off'], size=M*ldc)
            k(f's_mul_i32 s12, s13, {BM}')
            k(f'v_mul_u32_u24 v57, {BM//2}, v53')
            k('v_add_u32 v57, v57, v55')
            k('v_add_u32 v57, s12, v57')
            k(f's_mov_b32 s12, {ldc}')
            k('v_mul_lo_u32 v57, v57, s12')
            k('v_lshlrev_b32 v58, 5, v54')
            k('v_lshlrev_b32 v59, 2, v56')
            k('v_add_u32 v58, v58, v59')
            k('s_lshl_b32 s12, s14, 6')
            k('v_add_u32 v58, s12, v58')
            k('v_lshlrev_b32 v59, 1, v58')
            k('v_add_u32 v57, v57, v59')
            for mt in range(MT):
                dg = ACC + (mt*NT + 0)*16
                du = ACC + (mt*NT + 1)*16
                k(f's_mov_b32 s12, {mt*32*ldc}')
                for g in range(4):
                    for r in range(4):
                        a_ = dg + 4*g + r; u_ = du + 4*g + r
                        round_bf16(k, a_)
                        round_bf16(k, u_)
                        k(f'v_mul_f32 v62, {f32hex(-1.4426950408889634)}, {v(a_)}')
                        k('v_exp_f32 v62, v62')
                        k.nop(1)
                        k('v_add_f32 v62, 1.0, v62')
                        k('v_rcp_f32 v62, v62')
                        k.nop(1)
                        k(f'v_mul_f32 {v(a_)}, {v(a_)}, v62')
                        round_bf16(k, a_)
                        k(f'v_mul_f32 {v(a_)}, {v(a_)}, {v(u_)}')
                    k(f'v_cvt_pk_bf16_f32 v60, {v(dg+4*g)}, {v(dg+4*g+1)}')
                    k(f'v_cvt_pk_bf16_f32 v61, {v(dg+4*g+2)}, {v(dg+4*g+3)}')
                    k(f'buffer_store_dwordx2 v[60:61], v57, s[16:19], s12 offen offset:{g*16}')
                    k.nop(1)
    k.label(done)
    k.lds = NBUF * BUFSZ
    k.grid = ntiles_total
    return k

def bsrc_plain(arg, ldb):
    def f(k):
        k(f's_load_dwordx2 s[6:7], s[0:1], {ARG[arg]}')
        k('s_waitcnt lgkmcnt(0)')
        k('s_lshl_b32 s12, s14, 8')
        k('s_add_u32 s6, s6, s12')
        k('s_addc_u32 s7, s7, 0')
        k('s_add_u32 s8, s6, 128')
        k('s_addc_u32 s9, s7, 0')
        return ldb, False
    return f

def bsrc_pair(arg1, arg3, ldb):
    def f(k):
        k(f's_load_dwordx2 s[6:7], s[0:1], {ARG[arg1]}')
        k(f's_load_dwordx2 s[8:9], s[0:1], {ARG[arg3]}')
        k('s_waitcnt lgkmcnt(0)')
        k('s_lshl_b32 s12, s14, 7')
        k('s_add_u32 s6, s6, s12')
        k('s_addc_u32 s7, s7, 0')
        k('s_add_u32 s8, s8, s12')
        k('s_addc_u32 s9, s9, 0')
        return ldb, True
    return f
```

```python
MB = 1 << 20
WS = {}
off = 0
def _a(name, nbytes, align=4096):
    global off
    off = (off + align - 1) // align * align
    WS[name] = off
    off += nbytes
_a('MOD', 3840*4)
_a('CNT', 128*1024)
_a('ACC', 64*8*640*4)
_a('H1', 2048*640*2)
_a('Q', 2048*6144*2)
_a('K', 2048*6144*2)
_a('VT', 2048*6144*2)
_a('QM', 64*32*8*192*2)
_a('KM', 64*32*8*192*2)
_a('VMT', 64*32*8*192*2)
_a('O', 2048*6144*2)
_a('X1', 2048*640*2)
_a('H2', 2048*640*2)
_a('G', 2048*1536*2)
assert off < 256*MB
```

```python
import sys
sys.path.insert(0, 'dev')
from asmlib import *
from layout import WS
NAME = 'adaLN_cond__memory_aug_recurrent_mem_tr__glu_gated_swiglu__prompt'
LOG2E = 0x3fb8aa3b

def f32hex(x):
    import struct
    return '0x%08x' % struct.unpack('<I', struct.pack('<f', x))[0]

def wave_allreduce(k, vr, vt, op):
    ins = {'add': 'v_add_f32', 'max': 'v_max_f32'}[op]
    for off in (0x041F, 0x081F, 0x101F, 0x201F, 0x401F):
        k(f'ds_swizzle_b32 {v(vt)}, {v(vr)} offset:{off}')
        k('s_waitcnt lgkmcnt(0)')
        k(f'{ins} {v(vr)}, {v(vr)}, {v(vt)}')
    k(f'v_mov_b32 {v(vt)}, {v(vr)}')
    k.nop(2)
    k(f'v_permlane32_swap_b32 {v(vt)}, {v(vr)}')
    k.nop(1)
    k(f'{ins} {v(vr)}, {v(vr)}, {v(vt)}')

def round_bf16(k, vr, vt=None):
    k(f'v_cvt_pk_bf16_f32 {v(vr)}, {v(vr)}, {v(vr)}')
    k(f'v_and_b32 {v(vr)}, 0xffff0000, {v(vr)}')

def k_mod():
    k = Kern('mod_kernel', vgpr=240, sgpr=64)
    done = k.newlabel('done')
    k('s_cmp_ge_u32 s2, 30')
    k(f's_cbranch_scc1 {done}')
    load_srd(k, 'c', 8)
    load_srd(k, 'w_mod', 12)
    load_srd(k, 'ws', 16, off=WS['MOD'], size=3840*4)
    for p in range(3):
        k(f'v_add_u32 {v(1)}, {256*p}, v0')
        k(f'v_lshlrev_b32 {v(2)}, 1, {v(1)}')
        k(f'buffer_load_ushort {v(3)}, {v(2)}, s[8:11], 0 offen')
        k('s_waitcnt vmcnt(0)')
        k(f'v_lshlrev_b32 {v(3)}, 16, {v(3)}')
        k(f'v_mul_f32 {v(4)}, {f32hex(-1.4426950408889634)}, {v(3)}')
        k(f'v_exp_f32 {v(4)}, {v(4)}')
        k.nop(1)
        k(f'v_add_f32 {v(4)}, 1.0, {v(4)}')
        k(f'v_rcp_f32 {v(4)}, {v(4)}')
        k.nop(1)
        k(f'v_mul_f32 {v(4)}, {v(4)}, {v(3)}')
        round_bf16(k, 4)
        k(f'v_lshlrev_b32 {v(2)}, 2, {v(1)}')
        k(f'ds_write_b32 {v(2)}, {v(4)}')
    k('s_waitcnt lgkmcnt(0)')
    k('s_barrier')
    k('v_and_b32 v1, 63, v0')
    k('v_lshrrev_b32 v2, 6, v0')
    k('v_and_b32 v3, 15, v1')
    k('v_lshrrev_b32 v4, 4, v1')
    k('v_mul_u32_u24 v5, 160, v2')
    k('v_add_u32 v5, v5, v4')
    k('v_lshlrev_b32 v6, 2, v5')
    k('s_movk_i32 s20, 7680')
    k('v_mul_lo_u32 v5, v5, s20')
    k('v_lshlrev_b32 v3, 4, v3')
    k('v_add_u32 v5, v5, v3')
    k('s_lshl_b32 s21, s2, 8')
    k('v_add_u32 v5, s21, v5')
    for i in range(40):
        k(f's_mov_b32 s20, {i*4*7680}')
        k(f'buffer_load_dwordx4 {v(32+4*i,4)}, v5, s[12:15], s20 offen')
    for i in range(40):
        k(f'ds_read_b32 {v(192+i)}, v6 offset:{i*16}')
    for j in range(8):
        k(f'v_mov_b32 {v(8+j)}, 0')
    k('s_waitcnt lgkmcnt(0)')
    for i in range(40):
        k(f's_waitcnt vmcnt({39-i})')
        for d in range(4):
            r = 32 + 4*i + d
            k(f'v_lshlrev_b32 v16, 16, {v(r)}')
            k(f'v_and_b32 v17, 0xffff0000, {v(r)}')
            k(f'v_fmac_f32 {v(8+2*d)}, {v(192+i)}, v16')
            k(f'v_fmac_f32 {v(9+2*d)}, {v(192+i)}, v17')
    k('v_lshlrev_b32 v1, 5, v0')
    k('ds_write_b128 v1, v[8:11] offset:4096')
    k('ds_write_b128 v1, v[12:15] offset:4112')
    k('s_waitcnt lgkmcnt(0)')
    k('s_barrier')
    k('v_readfirstlane_b32 s22, v0')
    k.nop(4)
    k('s_cmp_ge_u32 s22, 128')
    k(f's_cbranch_scc1 {done}')
    k('v_lshrrev_b32 v1, 3, v0')
    k('v_and_b32 v2, 7, v0')
    k('v_lshlrev_b32 v1, 5, v1')
    k('v_lshlrev_b32 v2, 2, v2')
    k('v_add_u32 v1, v1, v2')
    for q in range(16):
        k(f'ds_read_b32 {v(32+q)}, v1 offset:{4096 + q*512}')
    k('s_waitcnt lgkmcnt(0)')
    for q in range(1, 16):
        k(f'v_add_f32 v32, v32, {v(32+q)}')
    round_bf16(k, 32)
    lab = k.newlabel('noadd')
    lab2 = k.newlabel('add')
    k('s_mul_i32 s23, s2, 52429')
    k('s_lshr_b32 s23, s23, 18')
    k('s_cmp_eq_u32 s23, 1')
    k(f's_cbranch_scc1 {lab2}')
    k('s_cmp_eq_u32 s23, 4')
    k(f's_cbranch_scc0 {lab}')
    k.label(lab2)
    k('v_add_f32 v32, 1.0, v32')
    round_bf16(k, 32)
    k.label(lab)
    k('s_lshl_b32 s21, s2, 9')
    k('v_lshlrev_b32 v1, 2, v0')
    k('v_add_u32 v1, s21, v1')
    k('buffer_store_dword v32, v1, s[16:19], 0 offen')
    k.label(done)
    return k

def k_ln(name, src, dst_off, shift_chunk, scale_chunk, zero=False):
    k = Kern(name, vgpr=64, sgpr=64)
    done = k.newlabel('done')
    k('s_cmp_ge_u32 s2, 512')
    k(f's_cbranch_scc1 {done}')
    if src[0] == 'arg':
        load_srd(k, src[1], 8)
    else:
        load_srd(k, 'ws', 8, off=src[1], size=2048*640*2)
    load_srd(k, 'ws', 12, off=WS['MOD'], size=3840*4)
    load_srd(k, 'ws', 16, off=dst_off, size=2048*640*2)
    if zero:
        zn = WS['ACC'] + 64*8*640*4 - WS['CNT']
        assert zn == 512*2816
        load_srd(k, 'ws', 20, off=WS['CNT'], size=zn)
        k('s_mul_i32 s24, s2, 2816')
        k('v_lshlrev_b32 v1, 4, v0')
        k('v_add_u32 v1, s24, v1')
        k('v_mov_b32 v4, 0'); k('v_mov_b32 v5, 0'); k('v_mov_b32 v6, 0'); k('v_mov_b32 v7, 0')
        k('v_cmp_gt_u32 vcc, 176, v0')
        k('s_and_saveexec_b64 s[26:27], vcc')
        k('buffer_store_dwordx4 v[4:7], v1, s[20:23], 0 offen')
        k('s_mov_b64 exec, s[26:27]')
    k('v_and_b32 v1, 63, v0')
    k('v_lshrrev_b32 v2, 6, v0')
    k('s_lshl_b32 s21, s2, 2')
    k('v_add_u32 v2, s21, v2')
    k('s_movk_i32 s20, 1280')
    k('v_mul_lo_u32 v2, v2, s20')
    k('v_lshlrev_b32 v3, 2, v1')
    k('v_add_u32 v2, v2, v3')
    k('v_lshlrev_b32 v3, 3, v1')
    for i in range(5):
        k(f'buffer_load_dword {v(8+i)}, v2, s[8:11], 0 offen offset:{256*i}')
    k('s_mov_b32 s23, %d' % (scale_chunk*2560))
    for i in range(5):
        k(f'buffer_load_dwordx2 {v(32+2*i,2)}, v3, s[12:15], s23 offen offset:{512*i}')
    k('s_mov_b32 s22, %d' % (shift_chunk*2560))
    for i in range(5):
        k(f'buffer_load_dwordx2 {v(44+2*i,2)}, v3, s[12:15], s22 offen offset:{512*i}')
    k('s_waitcnt vmcnt(10)')
    for i in range(5):
        k(f'v_lshlrev_b32 {v(16+2*i)}, 16, {v(8+i)}')
        k(f'v_and_b32 {v(17+2*i)}, 0xffff0000, {v(8+i)}')
    k('v_add_f32 v4, v16, v17')
    for j in range(2, 10):
        k(f'v_add_f32 v4, v4, {v(16+j)}')
    wave_allreduce(k, 4, 5, 'add')
    k(f'v_mul_f32 v4, {f32hex(1.0/640)}, v4')
    k('v_mov_b32 v6, 0')
    for j in range(10):
        k(f'v_sub_f32 v7, {v(16+j)}, v4')
        k('v_fmac_f32 v6, v7, v7')
    wave_allreduce(k, 6, 5, 'add')
    k(f'v_mul_f32 v6, {f32hex(1.0/640)}, v6')
    round_bf16(k, 4)
    round_bf16(k, 6)
    k(f'v_add_f32 v6, {f32hex(1e-5)}, v6')
    round_bf16(k, 6)
    k('v_sqrt_f32 v6, v6')
    k.nop(1)
    round_bf16(k, 6)
    k('v_rcp_f32 v6, v6')
    k.nop(1)
    k('s_waitcnt vmcnt(0)')
    for j in range(10):
        r = 16 + j
        k(f'v_sub_f32 {v(r)}, {v(r)}, v4')
        round_bf16(k, r)
        k(f'v_mul_f32 {v(r)}, {v(r)}, v6')
        round_bf16(k, r)
        k(f'v_mul_f32 {v(r)}, {v(r)}, {v(32+j)}')
        round_bf16(k, r)
        k(f'v_add_f32 {v(r)}, {v(r)}, {v(44+j)}')
    for i in range(5):
        k(f'v_cvt_pk_bf16_f32 {v(8+i)}, {v(16+2*i)}, {v(17+2*i)}')
    for i in range(5):
        k(f'buffer_store_dword {v(8+i)}, v2, s[16:19], 0 offen offset:{256*i}')
    k.label(done)
    return k

from chain import chain_kernel
from attn import attn_kernel
from gemm import gemm_kernel, bsrc_plain, bsrc_pair
HEADER = open(f'cdna_kernels/{NAME}.s.ref').read().split('; Override launch')[0]

def main():
    kerns = []; launches = []
    km = k_mod(); kerns.append(km); launches.append((km.name, (30,1,1), (256,1,1), 12288))
    k1 = k_ln('ln1_kernel', ('arg', 'A_x'), WS['H1'], 0, 1, zero=True); kerns.append(k1); launches.append((k1.name, (512,1,1), (256,1,1), 0))
    def add(kk, grid=None, block=256, lds=None):
        kerns.append(kk); launches.append((kk.name, (grid or kk.grid,1,1), (block,1,1), kk.lds if lds is None else lds))
    add(gemm_kernel('gq_kernel', 2048, 48, 640, 128, WS['H1'], 1280, bsrc_plain('Wq', 12288), dict(kind='store', ldc=12288, dst_off=WS['Q'])))
    add(gemm_kernel('gk_kernel', 2048, 48, 640, 128, WS['H1'], 1280, bsrc_plain('Wk', 12288), dict(kind='store', ldc=12288, dst_off=WS['K'])))
    add(gemm_kernel('gv_kernel', 2048, 48, 640, 128, WS['H1'], 1280, bsrc_plain('Wv', 12288), dict(kind='vt')))
    add(chain_kernel())
    add(attn_kernel())
    add(gemm_kernel('go_kernel', 2048, 5, 6144, 64, WS['O'], 12288, bsrc_plain('Wo', 1280), dict(kind='res', ldc=1280, dst_off=WS['X1'], res_arg='A_x', gate_chunk=2), NBUF=4, tile_map='plain'))
    k2 = k_ln('ln2_kernel', ('ws', WS['X1']), WS['H2'], 3, 4); kerns.append(k2); launches.append((k2.name, (512,1,1), (256,1,1), 0))
    add(gemm_kernel('f1_kernel', 2048, 24, 640, 128, WS['H2'], 1280, bsrc_pair('w1', 'w3', 3072), dict(kind='swiglu', ldc=3072, dst_off=WS['G'])))
    add(gemm_kernel('f2_kernel', 2048, 5, 1536, 64, WS['G'], 3072, bsrc_plain('w2', 1280), dict(kind='res', ldc=1280, dst_arg='out', res_off=WS['X1'], gate_chunk=5), NBUF=4, tile_map='plain'))
    for kk in kerns:
        for pr in sorted(set(lint(kk)))[:12]: print('LINT', pr)
    txt = build_file(HEADER, launches, kerns)
    outp = sys.argv[1] if len(sys.argv) > 1 else f'cdna_kernels/{NAME}.s'
    open(outp, 'w').write(txt)
    print('wrote', outp, len(txt))

if __name__ == '__main__':
    main()
```

```python
from asmlib import *
from layout import WS
import struct
def f32hex(x):
    return '0x%08x' % struct.unpack('<I', struct.pack('<f', x))[0]
def round_bf16(k, vr):
    k(f'v_cvt_pk_bf16_f32 {v(vr)}, {v(vr)}, {v(vr)}')
    k(f'v_and_b32 {v(vr)}, 0xffff0000, {v(vr)}')

def attn_kernel(k=None, sc='', poll=None):
    standalone = k is None
    if standalone:
        k = Kern('attn_kernel', vgpr=248, sgpr=64)
        done = k.newlabel('done')
        k('s_cmp_ge_u32 s2, 512')
        k(f's_cbranch_scc1 {done}')
        k('s_lshr_b32 s20, s2, 3')
        k('s_and_b32 s21, s2, 7')
    load_srd(k, 'ws', 4)
    k('v_and_b32 v1, 63, v0')
    k('v_lshrrev_b32 v2, 6, v0')
    k('v_and_b32 v3, 15, v1')
    k('v_lshrrev_b32 v4, 4, v1')
    k.nop(1)
    k('v_readfirstlane_b32 s25, v2')
    k.nop(4)
    k('s_lshl_b32 s21, s21, 2')
    k('s_add_u32 s21, s21, s25')
    QF, KF, ST, PF, VX, VM, OA = 16, 64, 136, 160, 176, 224, 16
    k('v_mul_u32_u24 v5, 12288, v3')
    k('s_mul_i32 s22, s21, 384')
    k('v_add_u32 v5, s22, v5')
    k('v_lshlrev_b32 v6, 4, v4')
    k('v_add_u32 v5, v5, v6')
    k('s_mul_i32 s23, s20, 32*12288')
    for t in range(2):
        k(f's_add_u32 s24, s23, {WS["Q"] + t*16*12288}')
        for kk in range(6):
            k(f'buffer_load_dwordx4 {v(QF + t*24 + kk*4, 4)}, v5, s[4:7], s24 offen offset:{kk*64}')
    for t in range(2):
        k(f's_add_u32 s24, s23, {WS["K"] + t*16*12288}')
        for kk in range(6):
            k(f'buffer_load_dwordx4 {v(KF + t*24 + kk*4, 4)}, v5, s[4:7], s24 offen offset:{kk*64}')
    k('v_and_b32 v7, 7, v3')
    k('v_lshlrev_b32 v6, 3, v4')
    k('v_add_u32 v7, v7, v6')
    k('v_lshlrev_b32 v7, 4, v7')
    k('s_lshl_b32 s24, s20, 5')
    k('s_add_u32 s24, s24, s21')
    k('s_mul_i32 s26, s24, 3072')
    k(f's_add_u32 s26, s26, {WS["KM"]}')
    k('s_mov_b32 s28, s26')
    if poll is None:
        for kk in range(6):
            k(f'buffer_load_dwordx4 {v(KF + 48 + kk*4, 4)}, v7, s[4:7], s26 offen offset:{kk*512}')
    k('v_lshlrev_b32 v8, 6, v3')
    k('v_lshlrev_b32 v9, 3, v4')
    k('v_add_u32 v8, v8, v9')
    k('s_mul_i32 s26, s24, 192*64')
    k(f's_add_u32 s26, s26, {WS["VT"]}')
    for et in range(12):
        k(f's_add_u32 s27, s26, {et*1024}')
        k(f'buffer_load_dwordx2 {v(VX+4*et,2)}, v8, s[4:7], s27 offen')
        k(f'buffer_load_dwordx2 {v(VX+4*et+2,2)}, v8, s[4:7], s27 offen offset:32')
    k('v_lshlrev_b32 v9, 4, v3')
    k('v_and_b32 v10, 1, v4')
    k('v_lshlrev_b32 v10, 3, v10')
    k('v_add_u32 v9, v9, v10')
    k('s_mul_i32 s26, s24, 192*16')
    k(f's_add_u32 s26, s26, {WS["VMT"]}')
    if poll is None:
        for et in range(12):
            k(f'buffer_load_dwordx2 {v(VM+2*et,2)}, v9, s[4:7], s26 offen offset:{et*256}')
        for i in range(24):
            k(f'v_mov_b32 {v(ST+i)}, 0')
        k('s_waitcnt vmcnt(36)')
    else:
        for i in range(24):
            k(f'v_mov_b32 {v(ST+i)}, 0')
        pl = k.newlabel('apoll'); pd = k.newlabel('apolld')
        k('s_mov_b32 s55, 0')
        k.label(pl)
        for kk in range(6):
            k(f'buffer_load_dwordx4 {v(KF + 48 + kk*4, 4)}, v7, s[4:7], s28 offen offset:{kk*512} sc0 sc1')
        for et in range(12):
            k(f'buffer_load_dwordx2 {v(VM+2*et,2)}, v9, s[4:7], s26 offen offset:{et*256} sc0 sc1')
        k('s_waitcnt vmcnt(0)')
        regs = list(range(KF+48, KF+72)) + list(range(VM, VM+24))
        k(f'v_max_u32 v11, {v(regs[0])}, {v(regs[1])}')
        for i in range(2, len(regs), 2):
            k(f'v_max3_u32 v11, v11, {v(regs[i])}, {v(regs[i+1])}')
        k('v_cmp_eq_u32 vcc, -1, v11')
        k.nop(1)
        k(f's_cbranch_vccz {pd}')
        k('s_sleep 16')
        k('s_add_u32 s55, s55, 1')
        k('s_cmp_lt_u32 s55, 400000')
        k(f's_cbranch_scc1 {pl}')
        k(f's_branch {poll}')
        k.label(pd)
    for kk in range(6):
        for kt in range(3):
            for qt in range(2):
                d = ST + (kt*2+qt)*4
                k(f'v_mfma_f32_16x16x32_bf16 {v(d,4)}, {v(KF+kt*24+kk*4,4)}, {v(QF+qt*24+kk*4,4)}, {v(d,4)}')
    k.nop(8)
    scale = 192 ** -0.5
    for i in range(24):
        round_bf16(k, ST+i)
        k(f'v_mul_f32 {v(ST+i)}, {f32hex(scale)}, {v(ST+i)}')
        round_bf16(k, ST+i)
    k(f'v_mov_b32 v11, {f32hex(-1e30)}')
    k('v_lshlrev_b32 v12, 2, v4')
    k('v_sub_u32 v12, v3, v12')
    for qt in range(2):
        for kt in range(2):
            for r in range(4):
                d = ST + (kt*2+qt)*4 + r
                thr = 16*(kt-qt) + r
                if thr <= -12:
                    continue
                if thr > 15:
                    k(f'v_mov_b32 {v(d)}, v11')
                    continue
                k(f'v_cmp_le_i32 vcc, {thr}, v12')
                k.nop(2)
                k(f'v_cndmask_b32 {v(d)}, v11, {v(d)}, vcc')
    k('v_cmp_gt_u32 vcc, 2, v4')
    k.nop(2)
    for qt in range(2):
        for r in range(4):
            d = ST + (4+qt)*4 + r
            k(f'v_cndmask_b32 {v(d)}, v11, {v(d)}, vcc')
    def xred(reg, tmp, ins):
        k(f'ds_swizzle_b32 {v(tmp)}, {v(reg)} offset:0x401F')
        k('s_waitcnt lgkmcnt(0)')
        k(f'{ins} {v(reg)}, {v(reg)}, {v(tmp)}')
        k(f'v_mov_b32 {v(tmp)}, {v(reg)}')
        k.nop(2)
        k(f'v_permlane32_swap_b32 {v(tmp)}, {v(reg)}')
        k.nop(1)
        k(f'{ins} {v(reg)}, {v(reg)}, {v(tmp)}')
    for qt in range(2):
        regs = [ST + (kt*2+qt)*4 + r for kt in range(3) for r in range(4)]
        k(f'v_max_f32 v13, {v(regs[0])}, {v(regs[1])}')
        for r in regs[2:]:
            k(f'v_max_f32 v13, v13, {v(r)}')
        xred(13, 14, 'v_max_f32')
        k('v_mov_b32 v15, 0')
        for r in regs:
            k(f'v_sub_f32 {v(r)}, {v(r)}, v13')
            k(f'v_mul_f32 {v(r)}, {f32hex(1.4426950408889634)}, {v(r)}')
            k(f'v_exp_f32 {v(r)}, {v(r)}')
        k.nop(1)
        for r in regs:
            k(f'v_add_f32 v15, v15, {v(r)}')
        xred(15, 14, 'v_add_f32')
        k('v_rcp_f32 v15, v15')
        k.nop(1)
        for r in regs:
            k(f'v_mul_f32 {v(r)}, {v(r)}, v15')
        for kt in range(3):
            d = ST + (kt*2+qt)*4
            k(f'v_cvt_pk_bf16_f32 {v(PF+8*qt+2*kt)}, {v(d)}, {v(d+1)}')
            k(f'v_cvt_pk_bf16_f32 {v(PF+8*qt+2*kt+1)}, {v(d+2)}, {v(d+3)}')
    for i in range(96):
        k(f'v_mov_b32 {v(OA+i)}, 0')
    k('s_waitcnt vmcnt(0)')
    k.nop(2)
    for et in range(12):
        for qt in range(2):
            d = OA + (et*2+qt)*4
            k(f'v_mfma_f32_16x16x32_bf16 {v(d,4)}, {v(VX+4*et,4)}, {v(PF+8*qt,4)}, {v(d,4)}')
    for et in range(12):
        for qt in range(2):
            d = OA + (et*2+qt)*4
            k(f'v_mfma_f32_16x16x16_bf16 {v(d,4)}, {v(VM+2*et,2)}, {v(PF+8*qt+4,2)}, {v(d,4)}')
    k.nop(10)
    k('v_mul_u32_u24 v5, 12288, v3')
    k('s_mul_i32 s22, s21, 384')
    k('v_add_u32 v5, s22, v5')
    k('v_lshlrev_b32 v6, 3, v4')
    k('v_add_u32 v5, v5, v6')
    for qt in range(2):
        k(f's_add_u32 s24, s23, {WS["O"] + qt*16*12288}')
        for et in range(12):
            d = OA + (et*2+qt)*4
            k(f'v_cvt_pk_bf16_f32 {v(PF)}, {v(d)}, {v(d+1)}')
            k(f'v_cvt_pk_bf16_f32 {v(PF+1)}, {v(d+2)}, {v(d+3)}')
            k(f'buffer_store_dwordx2 {v(PF,2)}, v5, s[4:7], s24 offen offset:{et*32} {sc}')
            k.nop(1)
    if standalone:
        k.label(done)
        k.lds = 0
        k.grid = 512
    return k
```

```python
from asmlib import *
from layout import WS
import struct
def f32hex(x):
    return '0x%08x' % struct.unpack('<I', struct.pack('<f', x))[0]
def round_bf16(k, vr):
    k(f'v_cvt_pk_bf16_f32 {v(vr)}, {v(vr)}, {v(vr)}')
    k(f'v_and_b32 {v(vr)}, 0xffff0000, {v(vr)}')

SPIN_LIMIT = 300000
NREP = 8
L_MEM = 0; MEM_STRIDE = 1296
L_RED = 10496
L_REDV = L_RED + 12800
L_O = L_REDV + 6144; O_STRIDE = 400
L_KV = 32768
SC = 'sc0 sc1'

def chain_body(k, done, nsteps=64, stamps=False, wait_kv=None):
    fail = k.newlabel('fail')
    def stamp(i):
        if stamps:
            k('s_memtime s[60:61]')
            k('s_waitcnt lgkmcnt(0)')
            k(f's_mov_b32 {s(64+i)}, s60')
    def flush():
        if stamps:
            k('s_lshl_b32 s62, s19, 6')
            k('s_add_u32 s62, s62, s50')
            k('s_lshl_b32 s62, s62, 6')
            k(f's_add_u32 s62, s62, {WS["STAMP"]}')
            sk = k.newlabel('sst')
            k('s_cmp_lg_u32 s25, 0')
            k(f's_cbranch_scc1 {sk}')
            k('v_mov_b32 v36, 0')
            k('s_mov_b64 exec, 1')
            for i in range(0, 8, 4):
                for q in range(4):
                    k(f'v_mov_b32 {v(32+q)}, {s(64+i+q)}')
                k(f'buffer_store_dwordx4 v[32:35], v36, s[4:7], s62 offen offset:{i*4}')
                k.nop(2)
            k('s_mov_b64 exec, -1')
            k.label(sk)
    k('s_and_b32 s22, s19, 7')
    k('s_lshr_b32 s23, s19, 3')
    k('s_lshr_b32 s20, s23, 2')
    k('s_lshl_b32 s24, s22, 2')
    k('s_add_u32 s20, s20, s24')
    k('s_and_b32 s21, s23, 3')
    load_srd(k, 'ws', 4)
    load_srd(k, 'dbg', 8)
    for i, nm in enumerate(('Wq', 'Wk', 'Wv')):
        k(f's_load_dwordx2 {s(26+2*i,2)}, s[0:1], {ARG[nm]}')
    k(f's_load_dwordx2 s[32:33], s[0:1], {ARG["Wo"]}')
    load_srd(k, 'A_mem0', 12)
    k('v_and_b32 v1, 63, v0')
    k('v_lshrrev_b32 v2, 6, v0')
    k('v_and_b32 v3, 15, v1')
    k('v_lshrrev_b32 v4, 4, v1')
    k.nop(1)
    k('v_readfirstlane_b32 s25, v2')
    k.nop(4)
    k('s_mul_i32 s34, s20, 192')
    k('s_mul_i32 s35, s21, 48')
    k('s_add_u32 s34, s34, s35')
    k('v_mul_u32_u24 v5, 160, v2')
    k('v_lshlrev_b32 v6, 3, v4')
    k('v_add_u32 v5, v5, v6')
    k('s_movk_i32 s35, 12288')
    k('v_mul_lo_u32 v5, v5, s35')
    k('v_add_u32 v6, s34, v3')
    k('v_lshlrev_b32 v6, 1, v6')
    k('v_add_u32 v5, v5, v6')
    for nt in range(9):
        base = 26 + 2*(nt // 3)
        k(f'v_add_u32 v6, {(nt%3)*32}, v5')
        for kk in range(5):
            for i in range(8):
                k(f'global_load_ushort {v(64 + kk*8 + i)}, v6, {s(base,2)}')
                step = 12288 if i < 7 else 12288*25
                if not (kk == 4 and i == 7):
                    k(f'v_add_u32 v6, {step}, v6')
        k('s_waitcnt vmcnt(0)')
        for kk in range(5):
            for i in range(4):
                r = 64 + kk*8 + 2*i
                k(f'v_lshl_or_b32 {v(r)}, {v(r+1)}, 16, {v(r)}')
                k(f'v_accvgpr_write_b32 {a((kk*9 + nt)*4 + i)}, {v(r)}')
    for slot in range(3):
        k('s_mul_i32 s34, s20, 192*640')
        k('s_mul_i32 s35, s21, 160')
        k('s_add_u32 s34, s34, s35')
        k(f's_add_u32 s35, s25, {4*slot}')
        k('s_min_u32 s35, s35, 9')
        k('s_lshl_b32 s35, s35, 4')
        k('s_add_u32 s34, s34, s35')
        k('v_mul_u32_u24 v6, 640*8, v4')
        k('v_add_u32 v6, v6, v3')
        k('v_add_u32 v6, s34, v6')
        k('v_lshlrev_b32 v6, 1, v6')
        for kk in range(6):
            for i in range(8):
                k(f'global_load_ushort {v(64 + kk*8 + i)}, v6, s[32:33]')
                step = 1280 if i < 7 else 1280*25
                if not (kk == 5 and i == 7):
                    k(f'v_add_u32 v6, {step}, v6')
        k('s_waitcnt vmcnt(0)')
        for kk in range(6):
            for i in range(4):
                r = 64 + kk*8 + 2*i
                k(f'v_lshl_or_b32 {v(r)}, {v(r+1)}, 16, {v(r)}')
                k(f'v_accvgpr_write_b32 {a(180 + slot*24 + kk*4 + i)}, {v(r)}')
    vMemRd, vRedWr, vRedWrV, vRedRd, vPub, vQf, vKr, vVr, vVm, vOwr, vOrd, vPst, vPrd, vMst, vMld = 5, 6, 7, 8, 9, 10, 11, 12, 13, 14, 15, 16, 17, 18, 19
    vML = 20; vKd, vVd = 30, 31
    k('v_and_b32 v32, 7, v1')
    k(f'v_mul_u32_u24 {v(vMemRd)}, {MEM_STRIDE}, v32')
    k('v_mul_u32_u24 v33, 320, v2')
    k(f'v_add_u32 {v(vMemRd)}, {v(vMemRd)}, v33')
    k('v_lshlrev_b32 v33, 4, v4')
    k(f'v_add_u32 {v(vMemRd)}, {v(vMemRd)}, v33')
    k(f'v_mul_u32_u24 {v(vRedWr)}, 3200, v2')
    k('v_mul_u32_u24 v33, 400, v32')
    k(f'v_add_u32 {v(vRedWr)}, {v(vRedWr)}, v33')
    k('v_lshlrev_b32 v33, 4, v4')
    k(f'v_add_u32 {v(vRedWr)}, {v(vRedWr)}, v33')
    k(f'v_add_u32 {v(vRedWr)}, {L_RED}, {v(vRedWr)}')
    k(f'v_mul_u32_u24 {v(vRedWrV)}, 1536, v2')
    k('v_lshlrev_b32 v33, 5, v3')
    k(f'v_add_u32 {v(vRedWrV)}, {v(vRedWrV)}, v33')
    k('v_and_b32 v33, 1, v4')
    k('v_lshlrev_b32 v33, 4, v33')
    k(f'v_add_u32 {v(vRedWrV)}, {v(vRedWrV)}, v33')
    k(f'v_add_u32 {v(vRedWrV)}, {L_REDV}, {v(vRedWrV)}')
    k('v_mul_u32_u24 v33, 43, v1')
    k('v_lshrrev_b32 v33, 8, v33')
    k('v_mul_u32_u24 v34, 6, v33')
    k('v_sub_u32 v34, v1, v34')
    k('v_mul_u32_u24 v35, 400, v33')
    k('v_lshlrev_b32 v36, 5, v34')
    k('v_add_u32 v35, v35, v36')
    k('v_mul_u32_u24 v36, 192, v2')
    k('v_add_u32 v35, v35, v36')
    k(f'v_add_u32 v35, {L_RED}, v35')
    k('s_mul_i32 s34, s20, 24')
    k('s_mul_i32 s35, s21, 6')
    k('s_add_u32 s34, s34, s35')
    k('v_add_u32 v36, s34, v34')
    k('v_lshlrev_b32 v36, 3, v36')
    k('v_add_u32 v36, v36, v33')
    k('v_lshlrev_b32 v36, 4, v36')
    k(f's_mov_b32 s34, {WS["KM"] - WS["QM"]}')
    k('v_mul_lo_u32 v37, v2, s34')
    k('v_add_u32 v36, v36, v37')
    k(f'v_add_u32 v36, {WS["QM"]}, v36')
    k('v_lshlrev_b32 v39, 5, v1')
    k(f'v_add_u32 v39, {L_REDV}, v39')
    k('s_mul_i32 s34, s20, 192')
    k('s_mul_i32 s35, s21, 48')
    k('s_add_u32 s34, s34, s35')
    k('v_add_u32 v40, s34, v1')
    k('v_lshlrev_b32 v40, 4, v40')
    k(f'v_add_u32 v40, {WS["VMT"]}, v40')
    k('v_cmp_gt_u32 vcc, 2, v2')
    k.nop(2)
    k(f'v_cndmask_b32 {v(vRedRd)}, v39, v35, vcc')
    k(f'v_cndmask_b32 {v(vPub)}, v40, v36, vcc')
    k('s_mul_i32 s34, s20, 192')
    k('v_lshlrev_b32 v35, 3, v4')
    k('v_add_u32 v35, v35, v32')
    k('v_add_u32 v35, s34, v35')
    k(f'v_lshlrev_b32 {v(vQf)}, 4, v35')
    k('v_add_u32 v35, s34, v3')
    k(f'v_lshlrev_b32 {v(vVm)}, 4, v35')
    k('v_and_b32 v36, 1, v4')
    k('v_lshlrev_b32 v36, 3, v36')
    k(f'v_add_u32 {v(vVm)}, {v(vVm)}, v36')
    k(f'v_mul_u32_u24 {v(vOwr)}, {O_STRIDE}, v32')
    k('v_lshlrev_b32 v35, 3, v4')
    k(f'v_add_u32 {v(vOwr)}, {v(vOwr)}, v35')
    k(f'v_add_u32 {v(vOwr)}, {L_O}, {v(vOwr)}')
    k(f'v_mul_u32_u24 {v(vOrd)}, {O_STRIDE}, v32')
    k('v_lshlrev_b32 v35, 4, v4')
    k(f'v_add_u32 {v(vOrd)}, {v(vOrd)}, v35')
    k(f'v_add_u32 {v(vOrd)}, {L_O}, {v(vOrd)}')
    k('s_lshl_b32 s34, s21, 5')
    k('s_add_u32 s34, s34, s20')
    k('s_lshl_b32 s34, s34, 3')
    k('v_add_u32 v35, s34, v32')
    k(f'v_mul_u32_u24 {v(vPst)}, 640, v35')
    k('v_lshlrev_b32 v35, 6, v2')
    k(f'v_add_u32 {v(vPst)}, {v(vPst)}, v35')
    k('v_lshlrev_b32 v35, 4, v4')
    k(f'v_add_u32 {v(vPst)}, {v(vPst)}, v35')
    k(f'v_add_u32 {v(vPst)}, {WS["PB"]}, {v(vPst)}')
    k('s_lshl_b32 s34, s21, 8')
    k('s_lshr_b32 s35, s20, 2')
    k('s_add_u32 s34, s34, s35')
    k('s_mul_i32 s34, s34, 640')
    k('s_and_b32 s35, s20, 3')
    k('s_mul_i32 s35, s35, 160')
    k('s_add_u32 s34, s34, s35')
    k(f's_add_u32 s34, s34, {WS["PB"]}')
    k('v_min_u32 v35, 39, v1')
    k('v_lshlrev_b32 v35, 2, v35')
    k(f'v_add_u32 {v(vPrd)}, s34, v35')
    k('s_lshr_b32 s35, s20, 2')
    k('s_mul_i32 s34, s35, 1280')
    k('s_mul_i32 s35, s21, 320')
    k('s_add_u32 s34, s34, s35')
    k('s_and_b32 s35, s20, 3')
    k('s_mul_i32 s35, s35, 80')
    k('s_add_u32 s34, s34, s35')
    k(f's_add_u32 s34, s34, {WS["MM"]}')
    k('v_lshlrev_b32 v35, 1, v1')
    k(f'v_add_u32 {v(vMst)}, s34, v35')
    k(f'v_lshlrev_b32 {v(vMld)}, 4, v1')
    for i in range(10):
        k(f'v_add_u32 v35, {64*i}, v1')
        k('v_mul_u32_u24 v36, 52429, v35')
        k('v_lshrrev_b32 v36, 22, v36')
        k('v_mul_u32_u24 v37, 80, v36')
        k('v_sub_u32 v37, v35, v37')
        k(f'v_mul_u32_u24 {v(vML+i)}, {MEM_STRIDE}, v36')
        k('v_lshlrev_b32 v37, 4, v37')
        k(f'v_add_u32 {v(vML+i)}, {v(vML+i)}, v37')
    k('v_and_b32 v33, 31, v1')
    k(f'v_mul_u32_u24 {v(vKd)}, 12288, v33')
    k('s_mul_i32 s34, s20, 384')
    k(f'v_add_u32 {v(vKd)}, s34, {v(vKd)}')
    k('v_lshrrev_b32 v33, 5, v1')
    k('v_lshlrev_b32 v33, 4, v33')
    k(f'v_add_u32 {v(vKd)}, {v(vKd)}, v33')
    k('s_mul_i32 s34, s20, 12288')
    k(f'v_lshlrev_b32 {v(vVd)}, 4, v1')
    k(f'v_add_u32 {v(vVd)}, s34, {v(vVd)}')
    k('v_lshlrev_b32 v33, 5, v4')
    k('v_add_u32 v33, v33, v3')
    k(f'v_lshlrev_b32 {v(vKr)}, 4, v33')
    k(f'v_add_u32 {v(vKr)}, {L_KV}, {v(vKr)}')
    k(f'v_lshlrev_b32 {v(vVr)}, 6, v3')
    k('v_lshlrev_b32 v33, 3, v4')
    k(f'v_add_u32 {v(vVr)}, {v(vVr)}, v33')
    k(f'v_add_u32 {v(vVr)}, {L_KV + 12288}, {v(vVr)}')
    QF, KMF, VMF, KX, ST, PF, VX, OACC = 64, 88, 112, 136, 184, 196, 204, 136
    ACC1, MF = 64, 104
    k('v_cmp_gt_u32 vcc, 48, v1'); k('s_mov_b64 s[40:41], vcc')
    k('v_cmp_gt_u32 vcc, 8, v3'); k('s_mov_b64 s[42:43], vcc')
    k('s_mov_b32 s44, 0x55555555'); k('s_mov_b32 s45, 0x55')
    for i in range(10):
        k(f'v_add_u32 v39, {i*1024}, {v(vMld)}')
        k(f'buffer_load_dwordx4 {v(64+4*i,4)}, v39, s[12:15], 0 offen')
    k('s_waitcnt vmcnt(0)')
    for i in range(10):
        k(f'ds_write_b128 {v(vML+i)}, {v(64+4*i,4)}')

    def spin_tail(pl, code):
        k('s_sleep 1')
        k('s_add_u32 s55, s55, 1')
        k(f's_cmp_lt_u32 s55, {SPIN_LIMIT}')
        k(f's_cbranch_scc1 {pl}')
        k(f's_mov_b32 s56, {code}')
        k(f's_branch {fail}')
    def prefetch_x(sreg):
        if wait_kv is not None:
            wait_kv(k, sreg, spin_tail)
        k(f's_and_b32 s58, {sreg}, 1')
        k('s_mul_i32 s58, s58, 24576')
        k(f's_add_u32 s58, s58, {L_KV}')
        k(f's_mul_i32 s52, {sreg}, 32*12288')
        k(f's_add_u32 s52, s52, {WS["K"]}')
        for i in range(12):
            k(f's_add_u32 m0, s58, {i*1024}')
            k(f's_add_u32 s53, s52, {i*32}')
            k(f'buffer_load_dwordx4 {v(vKd)}, s[4:7], s53 offen lds')
        k(f's_mul_i32 s52, {sreg}, 32*192*64')
        k(f's_add_u32 s52, s52, {WS["VT"]}')
        for i in range(12):
            k(f's_add_u32 m0, s58, {12288 + i*1024}')
            k(f's_add_u32 s53, s52, {i*1024}')
            k(f'buffer_load_dwordx4 {v(vVd)}, s[4:7], s53 offen lds')
    def maxchain(regs, acc):
        regs = list(regs)
        k(f'v_max_u32 {v(acc)}, {v(regs[0])}, {v(regs[1])}')
        rest = regs[2:]
        while len(rest) >= 2:
            k(f'v_max3_u32 {v(acc)}, {v(acc)}, {v(rest[0])}, {v(rest[1])}')
            rest = rest[2:]
        if rest:
            k(f'v_max_u32 {v(acc)}, {v(acc)}, {v(rest[0])}')

    k('s_mov_b32 s50, 0')
    sk0 = k.newlabel('sk0')
    k('s_cmp_lg_u32 s25, 3')
    k(f's_cbranch_scc1 {sk0}')
    prefetch_x('s50')
    k('s_waitcnt vmcnt(0)')
    k.label(sk0)
    k('s_waitcnt lgkmcnt(0)')
    k('s_barrier')
    loop = k.newlabel('loop')
    k.label(loop)
    stamp(0)
    k('s_mul_i32 s51, s50, 98304')
    for kk in range(5):
        k(f'ds_read_b128 {v(MF+4*kk,4)}, {v(vMemRd)} offset:{kk*64}')
    for i in range(36):
        k(f'v_mov_b32 {v(ACC1+i)}, 0')
    k('s_waitcnt lgkmcnt(0)')
    k.nop(1)
    for kk in range(5):
        for nt in range(9):
            if nt < 6:
                k(f'v_mfma_f32_16x16x32_bf16 {v(ACC1+4*nt,4)}, {a((kk*9+nt)*4,4)}, {v(MF+4*kk,4)}, {v(ACC1+4*nt,4)}')
            else:
                k(f'v_mfma_f32_16x16x32_bf16 {v(ACC1+4*nt,4)}, {v(MF+4*kk,4)}, {a((kk*9+nt)*4,4)}, {v(ACC1+4*nt,4)}')
    k.nop(8)
    for nt in range(6):
        k(f'ds_write_b128 {v(vRedWr)}, {v(ACC1+4*nt,4)} offset:{nt*64}')
    for nt in range(6, 9):
        k(f'ds_write_b128 {v(vRedWrV)}, {v(ACC1+4*nt,4)} offset:{(nt-6)*512}')
    k('s_waitcnt lgkmcnt(0)')
    k('s_barrier')
    r_v = k.newlabel('redv'); r_done = k.newlabel('redd'); r_w3 = k.newlabel('rw3')
    k('s_cmp_eq_u32 s25, 2')
    k(f's_cbranch_scc1 {r_v}')
    k('s_cmp_eq_u32 s25, 3')
    k(f's_cbranch_scc1 {r_w3}')
    k('s_mov_b64 exec, s[40:41]')
    for w in range(4):
        k(f'ds_read_b128 {v(32+8*w,4)}, {v(vRedRd)} offset:{w*3200}')
        k(f'ds_read_b128 {v(36+8*w,4)}, {v(vRedRd)} offset:{w*3200+16}')
    k('s_waitcnt lgkmcnt(0)')
    for r in range(8):
        k(f'v_add_f32 {v(32+r)}, {v(32+r)}, {v(40+r)}')
        k(f'v_add_f32 {v(48+r)}, {v(48+r)}, {v(56+r)}')
        k(f'v_add_f32 {v(32+r)}, {v(32+r)}, {v(48+r)}')
    for r in range(4):
        k(f'v_cvt_pk_bf16_f32 {v(40+r)}, {v(32+2*r)}, {v(33+2*r)}')
    k(f'buffer_store_dwordx4 v[40:43], {v(vPub)}, s[4:7], s51 offen {SC}')
    k('s_mov_b64 exec, -1')
    k(f's_branch {r_done}')
    k.label(r_v)
    k('s_mov_b64 exec, s[40:41]')
    for w in range(4):
        k(f'ds_read_b128 {v(32+8*w,4)}, {v(vRedRd)} offset:{w*1536}')
        k(f'ds_read_b128 {v(36+8*w,4)}, {v(vRedRd)} offset:{w*1536+16}')
    k('s_waitcnt lgkmcnt(0)')
    for r in range(8):
        k(f'v_add_f32 {v(32+r)}, {v(32+r)}, {v(40+r)}')
        k(f'v_add_f32 {v(48+r)}, {v(48+r)}, {v(56+r)}')
        k(f'v_add_f32 {v(32+r)}, {v(32+r)}, {v(48+r)}')
    for r in range(4):
        k(f'v_cvt_pk_bf16_f32 {v(40+r)}, {v(32+2*r)}, {v(33+2*r)}')
    k(f'buffer_store_dwordx4 v[40:43], {v(vPub)}, s[4:7], s51 offen {SC}')
    k('s_mov_b64 exec, -1')
    k(f's_branch {r_done}')
    k.label(r_w3)
    nopo = k.newlabel('nopo')
    k('s_cmp_eq_u32 s50, 0')
    k(f's_cbranch_scc1 {nopo}')
    k('s_add_u32 s52, s50, 1')
    k('s_and_b32 s52, s52, 1')
    k('s_mul_i32 s52, s52, 655360')
    k('s_mov_b32 s58, -1'); k('s_mov_b32 s59, 0xff')
    k('s_mov_b64 exec, s[58:59]')
    k('v_mov_b32 v33, -1')
    for hh in range(32):
        k(f's_add_u32 s53, s52, {hh*5120}')
        k(f'buffer_store_dword v33, {v(vPrd)}, s[4:7], s53 offen {SC}')
    k('s_mov_b64 exec, -1')
    k.label(nopo)
    nopf = k.newlabel('nopf')
    k(f's_cmp_ge_u32 s50, {nsteps-2}')
    k(f's_cbranch_scc1 {nopf}')
    k('s_add_u32 s57, s50, 1')
    prefetch_x('s57')
    k.label(nopf)
    k('s_waitcnt vmcnt(0)')
    k.label(r_done)
    stamp(1)
    k(f's_cmp_eq_u32 s50, {nsteps-1}')
    k(f's_cbranch_scc1 {done}')
    att_done = k.newlabel('attd')
    k('s_cmp_lg_u32 s25, 0')
    k(f's_cbranch_scc1 {att_done}')
    k(f's_add_u32 s52, s51, {WS["QM"]}')
    k(f's_add_u32 s53, s51, {WS["KM"]}')
    k(f's_add_u32 s54, s51, {WS["VMT"]}')
    k('s_and_b32 s58, s50, 1')
    k('s_mul_i32 s58, s58, 24576')
    k(f'v_add_u32 v34, s58, {v(vKr)}')
    k(f'v_add_u32 v35, s58, {v(vVr)}')
    for t in range(2):
        for kk in range(6):
            k(f'ds_read_b128 {v(KX+t*24+kk*4,4)}, v34 offset:{kk*2048 + t*256}')
    pl = k.newlabel('pollg'); pd = k.newlabel('pollgd')
    k('s_mov_b32 s55, 0')
    k.label(pl)
    for kk in range(6):
        k(f'buffer_load_dwordx4 {v(QF+4*kk,4)}, {v(vQf)}, s[4:7], s52 offen offset:{kk*512} {SC}')
        k(f'buffer_load_dwordx4 {v(KMF+4*kk,4)}, {v(vQf)}, s[4:7], s53 offen offset:{kk*512} {SC}')
    for i in range(12):
        k(f'buffer_load_dwordx2 {v(VMF+2*i,2)}, {v(vVm)}, s[4:7], s54 offen offset:{i*256} {SC}')
    k('s_waitcnt vmcnt(0)')
    maxchain(list(range(QF, QF+72)), 32)
    k('v_cmp_eq_u32 vcc, -1, v32')
    k.nop(1)
    k(f's_cbranch_vccz {pd}')
    spin_tail(pl, 1)
    k.label(pd)
    stamp(2)
    k('s_waitcnt lgkmcnt(0)')
    for i in range(12):
        k(f'v_mov_b32 {v(ST+i)}, 0')
    k.nop(1)
    for kk in range(6):
        k(f'v_mfma_f32_16x16x32_bf16 {v(ST,4)}, {v(KX+kk*4,4)}, {v(QF+4*kk,4)}, {v(ST,4)}')
        k(f'v_mfma_f32_16x16x32_bf16 {v(ST+4,4)}, {v(KX+24+kk*4,4)}, {v(QF+4*kk,4)}, {v(ST+4,4)}')
        k(f'v_mfma_f32_16x16x32_bf16 {v(ST+8,4)}, {v(KMF+kk*4,4)}, {v(QF+4*kk,4)}, {v(ST+8,4)}')
    VXR = 64
    for i in range(12):
        k(f'ds_read_b64 {v(VXR+4*i,2)}, v35 offset:{i*1024}')
        k(f'ds_read_b64 {v(VXR+4*i+2,2)}, v35 offset:{i*1024+32}')
    k.nop(4)
    scale = 192 ** -0.5
    for i in range(12):
        round_bf16(k, ST+i)
        k(f'v_mul_f32 {v(ST+i)}, {f32hex(scale)}, {v(ST+i)}')
        round_bf16(k, ST+i)
    for i in range(48):
        k(f'v_mov_b32 {v(OACC+i)}, 0')
    k('v_cmp_gt_u32 vcc, 2, v4')
    k(f'v_mov_b32 v32, {f32hex(-1e30)}')
    k.nop(1)
    for r in range(4):
        k(f'v_cndmask_b32 {v(ST+8+r)}, v32, {v(ST+8+r)}, vcc')
    k(f'v_max_f32 v33, {v(ST)}, {v(ST+1)}')
    for i in range(2, 12):
        k(f'v_max_f32 v33, v33, {v(ST+i)}')
    def xred(reg, tmp, ins):
        k(f'ds_swizzle_b32 {v(tmp)}, {v(reg)} offset:0x401F')
        k('s_waitcnt lgkmcnt(0)')
        k(f'{ins} {v(reg)}, {v(reg)}, {v(tmp)}')
        k(f'v_mov_b32 {v(tmp)}, {v(reg)}')
        k.nop(2)
        k(f'v_permlane32_swap_b32 {v(tmp)}, {v(reg)}')
        k.nop(1)
        k(f'{ins} {v(reg)}, {v(reg)}, {v(tmp)}')
    xred(33, 34, 'v_max_f32')
    k('v_mov_b32 v36, 0')
    for i in range(12):
        k(f'v_sub_f32 {v(ST+i)}, {v(ST+i)}, v33')
        k(f'v_mul_f32 {v(ST+i)}, {f32hex(1.4426950408889634)}, {v(ST+i)}')
        k(f'v_exp_f32 {v(ST+i)}, {v(ST+i)}')
    k.nop(1)
    for i in range(12):
        k(f'v_add_f32 v36, v36, {v(ST+i)}')
    xred(36, 34, 'v_add_f32')
    k('v_rcp_f32 v36, v36')
    k.nop(1)
    for i in range(12):
        k(f'v_mul_f32 {v(ST+i)}, {v(ST+i)}, v36')
    for i in range(6):
        k(f'v_cvt_pk_bf16_f32 {v(PF+i)}, {v(ST+2*i)}, {v(ST+2*i+1)}')
    k.nop(2)
    for i in range(12):
        k(f'v_mfma_f32_16x16x32_bf16 {v(OACC+4*i,4)}, {v(VXR+4*i,4)}, {v(PF,4)}, {v(OACC+4*i,4)}')
    for i in range(12):
        k(f'v_mfma_f32_16x16x16_bf16 {v(OACC+4*i,4)}, {v(VMF+2*i,2)}, {v(PF+4,2)}, {v(OACC+4*i,4)}')
    k.nop(10)
    for i in range(12):
        k(f'v_cvt_pk_bf16_f32 {v(32+2*(i%4))}, {v(OACC+4*i)}, {v(OACC+4*i+1)}')
        k(f'v_cvt_pk_bf16_f32 {v(33+2*(i%4))}, {v(OACC+4*i+2)}, {v(OACC+4*i+3)}')
        k(f'ds_write_b64 {v(vOwr)}, {v(32+2*(i%4),2)} offset:{i*32}')
    k.label(att_done)
    k('s_waitcnt lgkmcnt(0)')
    k('s_barrier')
    stamp(3)
    for kk in range(6):
        k(f'ds_read_b128 {v(MF+4*kk,4)}, {v(vOrd)} offset:{kk*64}')
    for i in range(12):
        k(f'v_mov_b32 {v(ACC1+i)}, 0')
    k('s_waitcnt lgkmcnt(0)')
    k.nop(1)
    for kk in range(6):
        for slot in range(3):
            k(f'v_mfma_f32_16x16x32_bf16 {v(ACC1+4*slot,4)}, {a(180+slot*24+kk*4,4)}, {v(MF+4*kk,4)}, {v(ACC1+4*slot,4)}')
    k.nop(8)
    k('s_and_b32 s52, s50, 1')
    k('s_mul_i32 s52, s52, 655360')
    k('s_mov_b64 exec, s[42:43]')
    k(f'buffer_store_dwordx4 {v(ACC1,4)}, {v(vPst)}, s[4:7], s52 offen {SC}')
    k(f'buffer_store_dwordx4 {v(ACC1+4,4)}, {v(vPst)}, s[4:7], s52 offen offset:256 {SC}')
    sk2 = k.newlabel('sk2')
    k('s_cmp_ge_u32 s25, 2')
    k(f's_cbranch_scc1 {sk2}')
    k(f'buffer_store_dwordx4 {v(ACC1+8,4)}, {v(vPst)}, s[4:7], s52 offen offset:512 {SC}')
    k.label(sk2)
    k('s_mov_b64 exec, -1')
    skb = k.newlabel('skipb')
    k('s_cmp_lg_u32 s25, 0')
    k(f's_cbranch_scc1 {skb}')
    stamp(4)
    pl = k.newlabel('pollr'); pd = k.newlabel('pollrd')
    k('s_mov_b32 s55, 0')
    k.label(pl)
    R0 = 136
    for hh in range(32):
        k(f's_add_u32 s53, s52, {hh*5120}')
        k(f'buffer_load_dword {v(R0+hh)}, {v(vPrd)}, s[4:7], s53 offen {SC}')
    k('s_waitcnt vmcnt(0)')
    maxchain(range(R0, R0+32), 32)
    k('v_cmp_eq_u32 vcc, -1, v32')
    k.nop(1)
    k(f's_cbranch_vccz {pd}')
    spin_tail(pl, 2)
    k.label(pd)
    stamp(5)
    regs = list(range(R0, R0+32))
    while len(regs) > 1:
        nxt = []
        for i in range(0, len(regs), 2):
            k(f'v_add_f32 {v(regs[i])}, {v(regs[i])}, {v(regs[i+1])}')
            nxt.append(regs[i])
        regs = nxt
    rs = regs[0]
    k.nop(2)
    k(f'v_mov_b32_dpp v33, {v(rs)} quad_perm:[1,0,3,2] row_mask:0xf bank_mask:0xf')
    k.nop(1)
    k(f'v_cvt_pk_bf16_f32 v32, {v(rs)}, v33')
    k('s_add_u32 s57, s50, 1')
    k('s_mul_i32 s53, s57, 10240')
    k('s_mov_b64 exec, s[44:45]')
    for rep in range(NREP):
        k(f'buffer_store_dword v32, {v(vMst)}, s[4:7], s53 offen {SC}')
        if rep < NREP-1:
            k(f's_add_u32 s53, s53, {64*10240}')
    k('s_mov_b64 exec, -1')
    stamp(6)
    k('s_add_u32 s57, s50, 1')
    k('s_mul_i32 s53, s57, 10240')
    k(f's_add_u32 s53, s53, {WS["MM"]}')
    k(f's_and_b32 s54, s19, {NREP-1}')
    k(f's_mul_i32 s54, s54, {64*10240}')
    k('s_add_u32 s53, s53, s54')
    k('s_add_u32 s54, s53, 4096')
    k('s_add_u32 s58, s53, 8192')
    pl = k.newlabel('pollm'); pd = k.newlabel('pollmd')
    k('s_mov_b32 s55, 0')
    k.label(pl)
    for i in range(10):
        sreg = ('s53', 's54', 's58')[i // 4]
        k(f'buffer_load_dwordx4 {v(168+4*i,4)}, {v(vMld)}, s[4:7], {sreg} offen offset:{(i%4)*1024} {SC}')
    k('s_waitcnt vmcnt(0)')
    maxchain(range(168, 208), 32)
    k('v_cmp_eq_u32 vcc, -1, v32')
    k.nop(1)
    k(f's_cbranch_vccz {pd}')
    spin_tail(pl, 3)
    k.label(pd)
    for i in range(10):
        k(f'ds_write_b128 {v(vML+i)}, {v(168+4*i,4)}')
    k.label(skb)
    k('s_mov_b64 exec, -1')
    k('s_waitcnt lgkmcnt(0)')
    k('s_barrier')
    stamp(7)
    flush()
    k('s_add_u32 s50, s50, 1')
    k(f's_branch {loop}')
    k.label(fail)
    k('v_mov_b32 v32, s56')
    k('v_mov_b32 v33, s50')
    k('v_mov_b32 v34, s2')
    k('v_mov_b32 v35, 0')
    k('s_mov_b64 exec, 1')
    k('buffer_store_dwordx3 v[32:34], v35, s[8:11], 0 offen')
    k(f's_branch {done}')

def chain_kernel(nsteps=64, stamps=False):
    k = Kern('chain_kernel', vgpr=512, sgpr=100, accum=256)
    done = k.newlabel('done')
    k('s_cmp_ge_u32 s2, 128')
    k(f's_cbranch_scc1 {done}')
    k('s_mov_b32 s19, s2')
    chain_body(k, done, nsteps, stamps)
    k.label(done)
    k.lds = 98304
    k.grid = 128
    return k
```

```python
from asmlib import *
from layout import WS
import struct
def f32hex(x):
    return '0x%08x' % struct.unpack('<I', struct.pack('<f', x))[0]

def round_bf16(k, vr):
    k(f'v_cvt_pk_bf16_f32 {v(vr)}, {v(vr)}, {v(vr)}')
    k(f'v_and_b32 {v(vr)}, 0xffff0000, {v(vr)}')

def gemm_kernel(name, M, Ntiles, K, BM, A_off, lda, bsrc, epi, NBUF=3, tile_map='xcd', k=None, sc='', ksplit=False):
    BK = 64
    MT = BM // 64
    NT = 2
    nst = K // BK
    Mtiles = M // BM
    ntiles_total = Mtiles * Ntiles
    ABYTES = BM * 128
    BUFSZ = ABYTES + 16384
    NA = BM // 32
    ALT = 0
    while ALT + BUFSZ <= 65536: ALT += BUFSZ
    assert NBUF*BUFSZ - ALT <= 65536
    if k is None:
        k = Kern(name, vgpr=136, sgpr=64)
        standalone = True
        done = k.newlabel('done')
        k(f's_cmp_ge_u32 s2, {ntiles_total}')
        k(f's_cbranch_scc1 {done}')
        if tile_map == 'xcd' and Ntiles % 8 == 0:
            per = Ntiles // 8
            k('s_and_b32 s15, s2, 7')
            k('s_lshr_b32 s12, s2, 3')
            assert (Mtiles & (Mtiles - 1)) == 0
            sh = Mtiles.bit_length() - 1
            k(f's_and_b32 s13, s12, {Mtiles-1}')
            k(f's_lshr_b32 s14, s12, {sh}')
            k(f's_mul_i32 s15, s15, {per}')
            k('s_add_u32 s14, s14, s15')
        else:
            assert (Mtiles & (Mtiles - 1)) == 0
            sh = Mtiles.bit_length() - 1
            k(f's_and_b32 s13, s2, {Mtiles-1}')
            k(f's_lshr_b32 s14, s2, {sh}')
    else:
        standalone = False
    k(f's_load_dwordx2 s[4:5], s[0:1], {ARG["ws"]}')
    k('s_waitcnt lgkmcnt(0)')
    k(f's_mul_i32 s12, s13, {BM*lda}')
    k(f's_add_u32 s4, s4, {A_off}')
    k('s_addc_u32 s5, s5, 0')
    k('s_add_u32 s4, s4, s12')
    k('s_addc_u32 s5, s5, 0')
    ldb, ffn_pair = bsrc(k)
    if ksplit:
        k(f's_mul_i32 s12, s15, {K*2}')
        k('s_add_u32 s4, s4, s12')
        k('s_addc_u32 s5, s5, 0')
        k(f's_mul_i32 s12, s15, {K*ldb}')
        for st in range(2):
            k(f's_add_u32 {s(6+2*st)}, {s(6+2*st)}, s12')
            k(f's_addc_u32 {s(7+2*st)}, {s(7+2*st)}, 0')
    k('v_and_b32 v48, 63, v0')
    k('v_lshrrev_b32 v49, 6, v0')
    k.nop(2)
    k('v_readfirstlane_b32 s10, v49')
    k.nop(4)
    k('s_lshl_b32 s11, s10, 11')
    k(f's_mul_i32 s10, s10, {BM//4*128}')
    k('v_lshrrev_b32 v50, 3, v48')
    k('v_and_b32 v51, 7, v48')
    k('v_lshrrev_b32 v52, 4, v48')
    k(f's_mov_b32 s12, {lda}')
    for i in range(NA):
        r0 = 8*i
        k(f'v_mul_u32_u24 v53, {BM//4}, v49')
        k(f'v_add_u32 v53, {r0}, v53')
        k('v_add_u32 v53, v53, v50')
        k('v_lshrrev_b32 v54, 1, v53')
        k('v_and_b32 v54, 7, v54')
        k('v_xor_b32 v54, v54, v51')
        k('v_lshlrev_b32 v54, 4, v54')
        k(f'v_mul_lo_u32 {v(1+i)}, v53, s12')
        k(f'v_add_u32 {v(1+i)}, {v(1+i)}, v54')
    k('v_lshrrev_b32 v53, 2, v51')
    k('v_and_b32 v54, 1, v52')
    k('v_xor_b32 v53, v53, v54')
    k('v_lshlrev_b32 v53, 2, v53')
    k('v_and_b32 v54, 3, v51')
    k('v_or_b32 v53, v53, v54')
    k('v_lshlrev_b32 v53, 4, v53')
    k('v_lshlrev_b32 v54, 4, v49')
    k('v_add_u32 v54, v54, v50')
    k(f's_mov_b32 s12, {ldb}')
    k('v_mul_lo_u32 v5, v54, s12')
    k('v_add_u32 v5, v5, v53')
    k(f'v_add_u32 v6, {8*ldb}, v5')
    k('v_lshrrev_b32 v53, 1, v49')
    k('v_and_b32 v54, 1, v49')
    k(f'v_mul_u32_u24 v55, {BM//2}, v53')
    k('v_and_b32 v56, 31, v48')
    k('v_add_u32 v55, v55, v56')
    k('v_lshrrev_b32 v56, 1, v55')
    k('v_and_b32 v56, 7, v56')
    k('v_lshrrev_b32 v57, 5, v48')
    k('v_xor_b32 v56, v56, v57')
    k('v_lshlrev_b32 v56, 4, v56')
    k('v_lshlrev_b32 v55, 7, v55')
    k('v_add_u32 v8, v55, v56')
    for ks in range(1, 4):
        k(f'v_xor_b32 {v(8+ks)}, {ks*32}, v8')
    k('v_and_b32 v55, 15, v48')
    k('v_lshrrev_b32 v55, 2, v55')
    k('v_lshrrev_b32 v56, 5, v48')
    k('v_lshlrev_b32 v56, 3, v56')
    k('v_add_u32 v56, v56, v55')
    k('v_lshrrev_b32 v57, 1, v55')
    k('v_and_b32 v57, 1, v57')
    k('v_lshlrev_b32 v57, 6, v57')
    k('v_lshlrev_b32 v56, 7, v56')
    k('v_add_u32 v56, v56, v57')
    k('v_and_b32 v57, 1, v52')
    k('v_lshlrev_b32 v57, 5, v57')
    k('v_add_u32 v56, v56, v57')
    k('v_and_b32 v57, 3, v48')
    k('v_lshlrev_b32 v57, 3, v57')
    k('v_add_u32 v56, v56, v57')
    k(f'v_add_u32 v56, {ABYTES}, v56')
    if ffn_pair:
        k('v_lshlrev_b32 v57, 6, v54')
        k('v_xor_b32 v12, v56, v57')
        k('v_mov_b32 v13, v12')
        boff = [0, 8192]
    else:
        k('v_lshlrev_b32 v57, 13, v54')
        k('v_add_u32 v12, v56, v57')
        k('v_xor_b32 v13, 64, v12')
        boff = [0, 0]
    ACC = 64
    for i in range(6):
        k(f'v_add_u32 {v(128+i)}, {ALT}, {v(8+i)}')
    for i in range(MT*NT*16):
        k(f'v_mov_b32 {v(ACC+i)}, 0')
    FR = 16
    def afrag(st, mt): return FR + st*16 + mt*4
    def bfrag(st, nt): return FR + st*16 + 8 + nt*4

    def issue(stage_buf):
        base = stage_buf * BUFSZ
        for i in range(NA):
            k(f's_add_u32 m0, s10, {base + i*1024}')
            k.nop(1)
            k(f'global_load_lds_dwordx4 {v(1+i)}, s[4:5]')
        for st in range(2):
            for i in range(2):
                k(f's_add_u32 m0, s11, {base + ABYTES + st*8192 + i*1024}')
                k.nop(1)
                k(f'global_load_lds_dwordx4 {v(5+i)}, {s(6+2*st,2)}')
        k('s_add_u32 s4, s4, 128')
        k('s_addc_u32 s5, s5, 0')
        for st in range(2):
            k(f's_add_u32 {s(6+2*st)}, {s(6+2*st)}, {64*ldb}')
            k(f's_addc_u32 {s(7+2*st)}, {s(7+2*st)}, 0')
    NL = NA + 4

    def reads(buf, ks, st):
        base = buf * BUFSZ
        ra = 8
        if base >= ALT:
            base -= ALT; ra = 128
        for mt in range(MT):
            k(f'ds_read_b128 {v(afrag(st,mt),4)}, {v(ra+ks)} offset:{base + mt*4096}')
        for nt in range(NT):
            for j in range(2):
                k(f'ds_read_b64_tr_b16 {v(bfrag(st,nt)+2*j,2)}, {v(ra+4+nt)} offset:{base + boff[nt] + ks*2048 + j*512}')
    NR = MT + 2*NT
    swapped = epi['kind'] not in ('vt', 'atomic')
    def mfmas(st):
        for mt in range(MT):
            for nt in range(NT):
                d = ACC + (mt*NT + nt)*16
                if swapped:
                    k(f'v_mfma_f32_32x32x16_bf16 {v(d,16)}, {v(bfrag(st,nt),4)}, {v(afrag(st,mt),4)}, {v(d,16)}')
                else:
                    k(f'v_mfma_f32_32x32x16_bf16 {v(d,16)}, {v(afrag(st,mt),4)}, {v(bfrag(st,nt),4)}, {v(d,16)}')

    def compute(buf):
        reads(buf, 0, 0)
        for ks in range(4):
            st = ks & 1
            if ks < 3:
                reads(buf, ks+1, st ^ 1)
                k(f's_waitcnt lgkmcnt({NR})')
            else:
                k('s_waitcnt lgkmcnt(0)')
            mfmas(st)

    def stage(t_buf, do_issue, outstanding_after):
        k(f's_waitcnt vmcnt({outstanding_after*NL})')
        k('s_barrier')
        if do_issue:
            issue((t_buf + NBUF - 1) % NBUF)
        compute(t_buf)

    npre = min(NBUF - 1, nst)
    for t in range(npre):
        issue(t)
    nsteady = nst - npre
    rem = nsteady % NBUF
    t = 0
    for _ in range(rem):
        stage(t % NBUF, True, NBUF - 2); t += 1
    nloops = nsteady // NBUF
    if nloops > 0:
        if nloops <= 2:
            for _ in range(nloops * NBUF):
                stage(t % NBUF, True, NBUF - 2); t += 1
        else:
            lp = k.newlabel('loop')
            k(f's_mov_b32 s12, {nloops}')
            k.label(lp)
            for q in range(NBUF):
                stage((t + q) % NBUF, True, NBUF - 2)
            k('s_sub_u32 s12, s12, 1')
            k('s_cmp_lg_u32 s12, 0')
            k(f's_cbranch_scc1 {lp}')
            t += nloops * NBUF
    while t < nst:
        stage(t % NBUF, False, nst - 1 - t); t += 1
    k.nop(16)
    k('v_and_b32 v48, 63, v0')
    k('v_lshrrev_b32 v49, 6, v0')
    k('v_lshrrev_b32 v53, 1, v49')
    k('v_and_b32 v54, 1, v49')
    k('v_and_b32 v55, 31, v48')
    k('v_lshrrev_b32 v56, 5, v48')
    kind = epi['kind']
    if kind == 'vt':
        load_srd(k, 'ws', 16, off=WS['VT'], size=2048*6144*2)
        k('s_lshl_b32 s12, s14, 7')
        k('v_lshlrev_b32 v57, 6, v54')
        k('v_add_u32 v57, v57, v55')
        k('v_add_u32 v57, s12, v57')
        k(f's_mul_i32 s12, s13, {BM//32}')
        k(f'v_mul_u32_u24 v58, {MT}, v53')
        k('v_add_u32 v58, s12, v58')
        k('s_movk_i32 s12, 6144')
        k('v_mul_lo_u32 v58, v58, s12')
        k('v_add_u32 v57, v57, v58')
        k('v_lshlrev_b32 v57, 6, v57')
        k('v_lshlrev_b32 v58, 3, v56')
        k('v_add_u32 v57, v57, v58')
        for mt in range(MT):
            for nt in range(NT):
                d = ACC + (mt*NT + nt)*16
                k(f's_mov_b32 s12, {mt*6144*64 + nt*32*64}')
                for g in range(4):
                    k(f'v_cvt_pk_bf16_f32 v60, {v(d+4*g)}, {v(d+4*g+1)}')
                    k(f'v_cvt_pk_bf16_f32 v61, {v(d+4*g+2)}, {v(d+4*g+3)}')
                    k(f'buffer_store_dwordx2 v[60:61], v57, s[16:19], s12 offen offset:{g*16} {sc}')
                    k.nop(1)
    elif kind == 'atomic':
        load_srd(k, 'ws', 16, off=WS['XACC'], size=2048*640*4)
        k(f's_mul_i32 s12, s13, {BM}')
        k(f'v_mul_u32_u24 v57, {BM//2}, v53')
        k('v_lshlrev_b32 v58, 2, v56')
        k('v_add_u32 v57, v57, v58')
        k('v_add_u32 v57, s12, v57')
        k('s_movk_i32 s12, 2560')
        k('v_mul_lo_u32 v57, v57, s12')
        k('v_lshlrev_b32 v58, 6, v54')
        k('v_add_u32 v58, v58, v55')
        k('s_lshl_b32 s12, s14, 7')
        k('v_add_u32 v58, s12, v58')
        k('v_lshlrev_b32 v58, 2, v58')
        k('v_add_u32 v57, v57, v58')
        for mt in range(MT):
            for nt in range(NT):
                d = ACC + (mt*NT + nt)*16
                for g in range(4):
                    for r in range(4):
                        k(f's_mov_b32 s12, {(mt*32 + 8*g + r)*2560 + nt*128}')
                        k(f'buffer_atomic_add_f32 {v(d+4*g+r)}, v57, s[16:19], s12 offen')
    else:
        ldc = epi['ldc']
        if kind in ('store', 'res'):
            if epi.get('dst_arg'):
                load_srd(k, epi['dst_arg'], 16)
            else:
                load_srd(k, 'ws', 16, off=epi['dst_off'], size=M*ldc)
            k(f's_mul_i32 s12, s13, {BM}')
            k(f'v_mul_u32_u24 v57, {BM//2}, v53')
            k('v_add_u32 v57, v57, v55')
            k('v_add_u32 v57, s12, v57')
            k(f's_mov_b32 s12, {ldc}')
            k('v_mul_lo_u32 v57, v57, s12')
            k('v_lshlrev_b32 v58, 6, v54')
            k('v_lshlrev_b32 v59, 2, v56')
            k('v_add_u32 v58, v58, v59')
            k('s_lshl_b32 s12, s14, 7')
            k('v_add_u32 v58, s12, v58')
            k('v_lshlrev_b32 v59, 1, v58')
            k('v_add_u32 v57, v57, v59')
            if 'colofs' in epi:
                pass
            if kind == 'store':
                for mt in range(MT):
                    for nt in range(NT):
                        d = ACC + (mt*NT + nt)*16
                        k(f's_mov_b32 s12, {mt*32*ldc + nt*64}')
                        for g in range(4):
                            k(f'v_cvt_pk_bf16_f32 v60, {v(d+4*g)}, {v(d+4*g+1)}')
                            k(f'v_cvt_pk_bf16_f32 v61, {v(d+4*g+2)}, {v(d+4*g+3)}')
                            k(f'buffer_store_dwordx2 v[60:61], v57, s[16:19], s12 offen offset:{g*16} {sc}')
                            k.nop(1)
            else:
                if epi.get('res_arg'):
                    load_srd(k, epi['res_arg'], 20)
                else:
                    load_srd(k, 'ws', 20, off=epi['res_off'], size=M*ldc)
                load_srd(k, 'ws', 24, off=WS['MOD'] + epi['gate_chunk']*2560, size=2560)
                k('v_lshlrev_b32 v59, 2, v58')
                for nt in range(NT):
                    for g in range(4):
                        k(f'buffer_load_dwordx4 {v(16+(nt*4+g)*4,4)}, v59, s[24:27], 0 offen offset:{nt*128 + g*32}')
                for mt in range(MT):
                    for nt in range(NT):
                        d = ACC + (mt*NT + nt)*16
                        k(f's_mov_b32 s12, {mt*32*ldc + nt*64}')
                        for g in range(4):
                            k(f'buffer_load_dwordx2 {v(4+2*g,2)}, v57, s[20:23], s12 offen offset:{g*16}')
                        k('s_waitcnt vmcnt(0)')
                        for g in range(4):
                            for r in range(4):
                                rr = d + 4*g + r
                                round_bf16(k, rr)
                                k(f'v_mul_f32 {v(rr)}, {v(rr)}, {v(16+(nt*4+g)*4+r)}')
                                round_bf16(k, rr)
                                if r % 2 == 0:
                                    k(f'v_lshlrev_b32 v62, 16, {v(4+2*g+r//2)}')
                                else:
                                    k(f'v_and_b32 v62, 0xffff0000, {v(4+2*g+r//2)}')
                                k(f'v_add_f32 {v(rr)}, {v(rr)}, v62')
                            k(f'v_cvt_pk_bf16_f32 v60, {v(d+4*g)}, {v(d+4*g+1)}')
                            k(f'v_cvt_pk_bf16_f32 v61, {v(d+4*g+2)}, {v(d+4*g+3)}')
                            k(f'buffer_store_dwordx2 v[60:61], v57, s[16:19], s12 offen offset:{g*16} {sc}')
                            k.nop(1)
        elif kind == 'swiglu':
            load_srd(k, 'ws', 16, off=epi['dst_off'], size=M*ldc)
            k(f's_mul_i32 s12, s13, {BM}')
            k(f'v_mul_u32_u24 v57, {BM//2}, v53')
            k('v_add_u32 v57, v57, v55')
            k('v_add_u32 v57, s12, v57')
            k(f's_mov_b32 s12, {ldc}')
            k('v_mul_lo_u32 v57, v57, s12')
            k('v_lshlrev_b32 v58, 5, v54')
            k('v_lshlrev_b32 v59, 2, v56')
            k('v_add_u32 v58, v58, v59')
            k('s_lshl_b32 s12, s14, 6')
            k('v_add_u32 v58, s12, v58')
            k('v_lshlrev_b32 v59, 1, v58')
            k('v_add_u32 v57, v57, v59')
            for mt in range(MT):
                dg = ACC + (mt*NT + 0)*16
                du = ACC + (mt*NT + 1)*16
                k(f's_mov_b32 s12, {mt*32*ldc}')
                for g in range(4):
                    for r in range(4):
                        a_ = dg + 4*g + r; u_ = du + 4*g + r
                        round_bf16(k, a_)
                        round_bf16(k, u_)
                        k(f'v_mul_f32 v62, {f32hex(-1.4426950408889634)}, {v(a_)}')
                        k('v_exp_f32 v62, v62')
                        k.nop(1)
                        k('v_add_f32 v62, 1.0, v62')
                        k('v_rcp_f32 v62, v62')
                        k.nop(1)
                        k(f'v_mul_f32 {v(a_)}, {v(a_)}, v62')
                        round_bf16(k, a_)
                        k(f'v_mul_f32 {v(a_)}, {v(a_)}, {v(u_)}')
                    k(f'v_cvt_pk_bf16_f32 v60, {v(dg+4*g)}, {v(dg+4*g+1)}')
                    k(f'v_cvt_pk_bf16_f32 v61, {v(dg+4*g+2)}, {v(dg+4*g+3)}')
                    k(f'buffer_store_dwordx2 v[60:61], v57, s[16:19], s12 offen offset:{g*16} {sc}')
                    k.nop(1)
    if standalone:
        k.label(done)
        k.lds = NBUF * BUFSZ
        k.grid = ntiles_total
    return k

def bsrc_plain(arg, ldb):
    def f(k):
        k(f's_load_dwordx2 s[6:7], s[0:1], {ARG[arg]}')
        k('s_waitcnt lgkmcnt(0)')
        k('s_lshl_b32 s12, s14, 8')
        k('s_add_u32 s6, s6, s12')
        k('s_addc_u32 s7, s7, 0')
        k('s_add_u32 s8, s6, 128')
        k('s_addc_u32 s9, s7, 0')
        return ldb, False
    return f

def bsrc_pair(arg1, arg3, ldb):
    def f(k):
        k(f's_load_dwordx2 s[6:7], s[0:1], {ARG[arg1]}')
        k(f's_load_dwordx2 s[8:9], s[0:1], {ARG[arg3]}')
        k('s_waitcnt lgkmcnt(0)')
        k('s_lshl_b32 s12, s14, 7')
        k('s_add_u32 s6, s6, s12')
        k('s_addc_u32 s7, s7, 0')
        k('s_add_u32 s8, s8, s12')
        k('s_addc_u32 s9, s9, 0')
        return ldb, True
    return f
```

```python
MB = 1 << 20
WS = {}
off = 0
def _a(name, nbytes, align=4096):
    global off
    off = (off + align - 1) // align * align
    WS[name] = off
    off += nbytes
_a('MOD', 3840*4)
_a('CNT', 128*1024)
_a('ACC', 64*8*640*4)
_a('XACC', 2048*640*4)
_a('H1', 2048*640*2)
_a('Q', 2048*6144*2)
_a('K', 2048*6144*2)
_a('VT', 2048*6144*2)
_a('PB', 2*8*32*8*80*4)
_a('MM', 8*64*8*640*2)
_a('QM', 64*32*8*192*2)
_a('KM', 64*32*8*192*2)
_a('VMT', 64*32*8*192*2)
WS['POISON_END'] = off
_a('O', 2048*6144*2)
_a('X1', 2048*640*2)
_a('H2', 2048*640*2)
_a('G', 2048*1536*2)
_a('STAMP', 256*64*16*4)
assert off < 256*MB
```

```python
from asmlib import *
from layout import WS
from gemm import gemm_kernel, bsrc_plain, bsrc_pair, f32hex, round_bf16
from attn import attn_kernel
from chain5 import chain_body

C_KV, C_Q, C_ATT, C_WO, C_LN, C_F1 = 0, 16, 32, 48, 64, 80
SCW = 'sc0 sc1'

def wave_allreduce(k, vr, vt, op):
    ins = {'add': 'v_add_f32', 'max': 'v_max_f32'}[op]
    for off in (0x041F, 0x081F, 0x101F, 0x201F, 0x401F):
        k(f'ds_swizzle_b32 {v(vt)}, {v(vr)} offset:{off}')
        k('s_waitcnt lgkmcnt(0)')
        k(f'{ins} {v(vr)}, {v(vr)}, {v(vt)}')
    k(f'v_mov_b32 {v(vt)}, {v(vr)}')
    k.nop(2)
    k(f'v_permlane32_swap_b32 {v(vt)}, {v(vr)}')
    k.nop(1)
    k(f'{ins} {v(vr)}, {v(vr)}, {v(vt)}')

def ln2_body(k):
    k('s_mov_b32 s31, s13')
    load_srd(k, 'A_x', 8)
    load_srd(k, 'ws', 12, off=WS['MOD'], size=3840*4)
    load_srd(k, 'ws', 16, off=WS['X1'], size=2048*640*2)
    load_srd(k, 'ws', 20, off=WS['H2'], size=2048*640*2)
    load_srd(k, 'ws', 24, off=WS['XACC'], size=2048*640*4)
    k('v_and_b32 v1, 63, v0')
    k('v_lshrrev_b32 v2, 6, v0')
    k('v_lshlrev_b32 v2, 2, v2')
    k('v_add_u32 v2, s31, v2')
    k('s_movk_i32 s28, 1280')
    k('v_mul_lo_u32 v2, v2, s28')
    k('v_lshlrev_b32 v3, 2, v1')
    k('v_add_u32 v2, v2, v3')
    k('v_lshlrev_b32 v58, 1, v2')
    k('v_lshlrev_b32 v3, 3, v1')
    for ch, base in ((2, 60), (4, 32), (3, 44)):
        k(f's_mov_b32 s29, {ch*2560}')
        for i in range(5):
            k(f'buffer_load_dwordx2 {v(base+2*i,2)}, v3, s[12:15], s29 offen offset:{512*i}')
    for rr in range(4):
        k(f's_mov_b32 s29, {rr*1280}')
        k(f's_mov_b32 s30, {rr*2560}')
        for i in range(5):
            k(f'buffer_load_dword {v(8+i)}, v2, s[8:11], s29 offen offset:{256*i}')
        for i in range(5):
            k(f'buffer_load_dwordx2 {v(70+2*i,2)}, v58, s[24:27], s30 offen offset:{512*i}')
        k('s_waitcnt vmcnt(0)')
        for j in range(10):
            r = 70 + j
            round_bf16(k, r)
            k(f'v_mul_f32 {v(r)}, {v(r)}, {v(60+j)}')
            round_bf16(k, r)
            if j % 2 == 0:
                k(f'v_lshlrev_b32 {v(16+j)}, 16, {v(8+j//2)}')
            else:
                k(f'v_and_b32 {v(16+j)}, 0xffff0000, {v(8+j//2)}')
            k(f'v_add_f32 {v(16+j)}, {v(16+j)}, {v(r)}')
            round_bf16(k, 16+j)
        for i in range(5):
            k(f'v_cvt_pk_bf16_f32 {v(8+i)}, {v(16+2*i)}, {v(17+2*i)}')
        for i in range(5):
            k(f'buffer_store_dword {v(8+i)}, v2, s[16:19], s29 offen offset:{256*i} {SCW}')
        k('v_add_f32 v4, v16, v17')
        for j in range(2, 10):
            k(f'v_add_f32 v4, v4, {v(16+j)}')
        wave_allreduce(k, 4, 5, 'add')
        k(f'v_mul_f32 v4, {f32hex(1.0/640)}, v4')
        k('v_mov_b32 v6, 0')
        for j in range(10):
            k(f'v_sub_f32 v7, {v(16+j)}, v4')
            k('v_fmac_f32 v6, v7, v7')
        wave_allreduce(k, 6, 5, 'add')
        k(f'v_mul_f32 v6, {f32hex(1.0/640)}, v6')
        round_bf16(k, 4)
        round_bf16(k, 6)
        k(f'v_add_f32 v6, {f32hex(1e-5)}, v6')
        round_bf16(k, 6)
        k('v_sqrt_f32 v6, v6')
        k.nop(1)
        round_bf16(k, 6)
        k('v_rcp_f32 v6, v6')
        k.nop(1)
        for j in range(10):
            r = 16 + j
            k(f'v_sub_f32 {v(r)}, {v(r)}, v4')
            round_bf16(k, r)
            k(f'v_mul_f32 {v(r)}, {v(r)}, v6')
            round_bf16(k, r)
            k(f'v_mul_f32 {v(r)}, {v(r)}, {v(32+j)}')
            round_bf16(k, r)
            k(f'v_add_f32 {v(r)}, {v(r)}, {v(44+j)}')
        for i in range(5):
            k(f'v_cvt_pk_bf16_f32 {v(80+i)}, {v(16+2*i)}, {v(17+2*i)}')
        for i in range(5):
            k(f'buffer_store_dword {v(80+i)}, v2, s[20:23], s29 offen offset:{256*i} {SCW}')

def mega_kernel(stamps=False):
    k = Kern('mega_kernel', vgpr=512, sgpr=102, accum=256)
    done = k.newlabel('done')
    worker = k.newlabel('worker')
    k('s_cmp_ge_u32 s2, 256')
    k(f's_cbranch_scc1 {done}')
    k('s_lshr_b32 s90, s2, 4')
    k('s_lshl_b32 s90, s90, 3')
    k('s_and_b32 s91, s2, 7')
    k('s_or_b32 s90, s90, s91')
    k('s_and_b32 s91, s2, 8')
    k('s_cmp_lg_u32 s91, 0')
    k(f's_cbranch_scc1 {worker}')
    k('s_mov_b32 s19, s90')
    def wait_kv(k, sreg, spin_tail):
        k(f's_lshr_b32 s58, {sreg}, 2')
        k('s_lshl_b32 s58, s58, 7')
        k(f's_add_u32 s58, s58, {WS["CNT"] + C_KV*128}')
        k('v_mov_b32 v33, s58')
        pl = k.newlabel('wkv'); pd = k.newlabel('wkvd')
        k('s_mov_b32 s55, 0')
        k.label(pl)
        k('buffer_load_dword v34, v33, s[4:7], 0 offen sc1')
        k('s_waitcnt vmcnt(0)')
        k('v_cmp_gt_u32 vcc, 96, v34')
        k.nop(1)
        k(f's_cbranch_vccz {pd}')
        k('s_sleep 8')
        spin_tail(pl, 4)
        k.label(pd)
        k('buffer_inv sc1')
        k('s_waitcnt vmcnt(0)')
    chain_body(k, done, 64, stamps, wait_kv=wait_kv)
    k.label(worker)
    load_srd(k, 'ws', 80)
    k('v_lshrrev_b32 v1, 6, v0')
    k.nop(1)
    k('v_readfirstlane_b32 s94, v1')
    k.nop(4)
    def wait(ctr_base, breg, target):
        pl = k.newlabel('wl'); pd = k.newlabel('wd')
        k('s_cmp_lg_u32 s94, 0')
        k(f's_cbranch_scc1 {pd}')
        k(f's_lshl_b32 s93, {breg}, 7')
        k(f's_add_u32 s93, s93, {WS["CNT"] + ctr_base*128}')
        k('v_mov_b32 v1, s93')
        k('s_mov_b32 s95, 0')
        k.label(pl)
        k('buffer_load_dword v2, v1, s[80:83], 0 offen sc1')
        k('s_waitcnt vmcnt(0)')
        k(f'v_cmp_gt_u32 vcc, {target}, v2')
        k.nop(1)
        ok = k.newlabel('wok')
        k(f's_cbranch_vccz {ok}')
        k('s_sleep 16')
        k('s_add_u32 s95, s95, 1')
        k('s_cmp_lt_u32 s95, 400000')
        k(f's_cbranch_scc1 {pl}')
        k(f's_branch {done}')
        k.label(ok)
        k('buffer_inv sc1')
        k('s_waitcnt vmcnt(0)')
        k.label(pd)
        k('s_barrier')
    def signal(ctr_base, breg):
        sk = k.newlabel('sg')
        k('s_waitcnt vmcnt(0)')
        k('s_barrier')
        k('s_cmp_lg_u32 s94, 0')
        k(f's_cbranch_scc1 {sk}')
        k(f's_lshl_b32 s93, {breg}, 7')
        k(f's_add_u32 s93, s93, {WS["CNT"] + ctr_base*128}')
        k('v_mov_b32 v1, s93')
        k('v_mov_b32 v2, 1')
        k('s_mov_b64 exec, 1')
        k('buffer_atomic_add v2, v1, s[80:83], 0 offen sc1')
        k('s_mov_b64 exec, -1')
        k.label(sk)
    pa = k.newlabel('pa'); pa_q = k.newlabel('paq'); pa_v = k.newlabel('pav'); pa_next = k.newlabel('pan'); pb = k.newlabel('pb')
    k('s_mov_b32 s91, s90')
    k.label(pa)
    k('s_cmp_ge_u32 s91, 2304')
    k(f's_cbranch_scc1 {pb}')
    k('s_cmp_ge_u32 s91, 1536')
    k(f's_cbranch_scc1 {pa_q}')
    k('s_mul_i32 s13, s91, 43691')
    k('s_lshr_b32 s13, s13, 22')
    k('s_mul_i32 s14, s13, 96')
    k('s_sub_u32 s14, s91, s14')
    k('s_mov_b32 s92, s13')
    k('s_cmp_ge_u32 s14, 48')
    k(f's_cbranch_scc1 {pa_v}')
    gemm_kernel(None, 2048, 48, 640, 128, WS['H1'], 1280, bsrc_plain('Wk', 12288), dict(kind='store', ldc=12288, dst_off=WS['K']), k=k, sc=SCW)
    signal(C_KV, 's92')
    k(f's_branch {pa_next}')
    k.label(pa_v)
    k('s_sub_u32 s14, s14, 48')
    gemm_kernel(None, 2048, 48, 640, 128, WS['H1'], 1280, bsrc_plain('Wv', 12288), dict(kind='vt'), k=k, sc=SCW)
    signal(C_KV, 's92')
    k(f's_branch {pa_next}')
    k.label(pa_q)
    k('s_sub_u32 s92, s91, 1536')
    k('s_mul_i32 s13, s92, 43691')
    k('s_lshr_b32 s13, s13, 21')
    k('s_mul_i32 s14, s13, 48')
    k('s_sub_u32 s14, s92, s14')
    k('s_mov_b32 s92, s13')
    gemm_kernel(None, 2048, 48, 640, 128, WS['H1'], 1280, bsrc_plain('Wq', 12288), dict(kind='store', ldc=12288, dst_off=WS['Q']), k=k, sc=SCW)
    signal(C_Q, 's92')
    k.label(pa_next)
    k('s_add_u32 s91, s91, 128')
    k(f's_branch {pa}')
    k.label(pb)
    l_wo = k.newlabel('bwo'); l_ln = k.newlabel('bln'); l_f1 = k.newlabel('bf1'); l_f2 = k.newlabel('bf2')
    k('s_cmp_ge_u32 s90, 124'); k(f's_cbranch_scc1 {done}')
    k('s_cmp_ge_u32 s90, 104'); k(f's_cbranch_scc1 {l_f2}')
    k('s_cmp_ge_u32 s90, 80'); k(f's_cbranch_scc1 {l_f1}')
    k('s_cmp_ge_u32 s90, 72'); k(f's_cbranch_scc1 {l_ln}')
    k('s_cmp_ge_u32 s90, 32'); k(f's_cbranch_scc1 {l_wo}')
    lp = k.newlabel('latt')
    k('s_mov_b32 s91, 0')
    k.label(lp)
    wait(C_Q, 's91', 48)
    wait(C_KV, 's91', 96)
    k('s_lshl_b32 s20, s91, 2')
    k('s_lshr_b32 s21, s90, 3')
    k('s_add_u32 s20, s20, s21')
    k('s_and_b32 s21, s90, 7')
    attn_kernel(k=k, sc=SCW, poll=done)
    signal(C_ATT, 's91')
    k('s_add_u32 s91, s91, 1')
    k('s_cmp_lt_u32 s91, 16')
    k(f's_cbranch_scc1 {lp}')
    k(f's_branch {done}')
    k.label(l_wo)
    lp = k.newlabel('lwo')
    k('s_mov_b32 s91, 0')
    k.label(lp)
    wait(C_ATT, 's91', 32)
    k('s_sub_u32 s92, s90, 32')
    k('s_and_b32 s15, s92, 3')
    k('s_lshr_b32 s92, s92, 2')
    k('s_lshl_b32 s13, s91, 1')
    k('s_mov_b32 s14, s92')
    sk = k.newlabel('wot')
    k('s_cmp_lt_u32 s92, 5'); k(f's_cbranch_scc1 {sk}')
    k('s_add_u32 s13, s13, 1'); k('s_sub_u32 s14, s92, 5')
    k.label(sk)
    gemm_kernel(None, 2048, 5, 1536, 64, WS['O'], 12288, bsrc_plain('Wo', 1280), dict(kind='atomic'), NBUF=4, k=k, sc=SCW, ksplit=True)
    signal(C_WO, 's91')
    k('s_add_u32 s91, s91, 1')
    k('s_cmp_lt_u32 s91, 16')
    k(f's_cbranch_scc1 {lp}')
    k(f's_branch {done}')
    k.label(l_ln)
    lp = k.newlabel('lln')
    k('s_mov_b32 s91, 0')
    k.label(lp)
    wait(C_WO, 's91', 40)
    k('s_sub_u32 s92, s90, 72')
    k('s_lshl_b32 s13, s91, 7')
    k('s_lshl_b32 s92, s92, 4')
    k('s_add_u32 s13, s13, s92')
    ln2_body(k)
    signal(C_LN, 's91')
    k('s_add_u32 s91, s91, 1')
    k('s_cmp_lt_u32 s91, 16')
    k(f's_cbranch_scc1 {lp}')
    k(f's_branch {done}')
    k.label(l_f1)
    lp = k.newlabel('lf1')
    k('s_mov_b32 s91, 0')
    k.label(lp)
    wait(C_LN, 's91', 8)
    k('s_mov_b32 s13, s91')
    k('s_sub_u32 s14, s90, 80')
    gemm_kernel(None, 2048, 24, 640, 128, WS['H2'], 1280, bsrc_pair('w1', 'w3', 3072), dict(kind='swiglu', ldc=3072, dst_off=WS['G']), k=k, sc=SCW)
    signal(C_F1, 's91')
    k('s_add_u32 s91, s91, 1')
    k('s_cmp_lt_u32 s91, 16')
    k(f's_cbranch_scc1 {lp}')
    k(f's_branch {done}')
    k.label(l_f2)
    lp = k.newlabel('lf2')
    k('s_sub_u32 s92, s90, 104')
    k('s_mov_b32 s91, 0')
    sk = k.newlabel('f2g')
    k('s_cmp_lt_u32 s92, 10'); k(f's_cbranch_scc1 {sk}')
    k('s_mov_b32 s91, 1'); k('s_sub_u32 s92, s92, 10')
    k.label(sk)
    k('s_mov_b32 s96, s92')
    k.label(lp)
    wait(C_F1, 's91', 24)
    k('s_lshl_b32 s13, s91, 1')
    k('s_mov_b32 s14, s96')
    sk = k.newlabel('f2t')
    k('s_cmp_lt_u32 s96, 5'); k(f's_cbranch_scc1 {sk}')
    k('s_add_u32 s13, s13, 1'); k('s_sub_u32 s14, s96, 5')
    k.label(sk)
    gemm_kernel(None, 2048, 5, 1536, 64, WS['G'], 3072, bsrc_plain('w2', 1280), dict(kind='res', ldc=1280, dst_arg='out', res_off=WS['X1'], gate_chunk=5), NBUF=4, k=k)
    k('s_waitcnt vmcnt(0)')
    k('s_barrier')
    k('s_add_u32 s91, s91, 2')
    k('s_cmp_lt_u32 s91, 16')
    k(f's_cbranch_scc1 {lp}')
    k.label(done)
    k.lds = 98304
    k.grid = 256
    return k
```

```python
import sys, os
sys.path.insert(0, 'dev')
from asmlib import *
from layout import WS
NAME = 'adaLN_cond__memory_aug_recurrent_mem_tr__glu_gated_swiglu__prompt'
LOG2E = 0x3fb8aa3b

def f32hex(x):
    import struct
    return '0x%08x' % struct.unpack('<I', struct.pack('<f', x))[0]

def wave_allreduce(k, vr, vt, op):
    ins = {'add': 'v_add_f32', 'max': 'v_max_f32'}[op]
    for off in (0x041F, 0x081F, 0x101F, 0x201F, 0x401F):
        k(f'ds_swizzle_b32 {v(vt)}, {v(vr)} offset:{off}')
        k('s_waitcnt lgkmcnt(0)')
        k(f'{ins} {v(vr)}, {v(vr)}, {v(vt)}')
    k(f'v_mov_b32 {v(vt)}, {v(vr)}')
    k.nop(2)
    k(f'v_permlane32_swap_b32 {v(vt)}, {v(vr)}')
    k.nop(1)
    k(f'{ins} {v(vr)}, {v(vr)}, {v(vt)}')

def round_bf16(k, vr, vt=None):
    k(f'v_cvt_pk_bf16_f32 {v(vr)}, {v(vr)}, {v(vr)}')
    k(f'v_and_b32 {v(vr)}, 0xffff0000, {v(vr)}')

def k_mod():
    k = Kern('mod_kernel', vgpr=240, sgpr=64)
    done = k.newlabel('done')
    k('s_cmp_ge_u32 s2, 30')
    k(f's_cbranch_scc1 {done}')
    load_srd(k, 'c', 8)
    load_srd(k, 'w_mod', 12)
    load_srd(k, 'ws', 16, off=WS['MOD'], size=3840*4)
    for p in range(3):
        k(f'v_add_u32 {v(1)}, {256*p}, v0')
        k(f'v_lshlrev_b32 {v(2)}, 1, {v(1)}')
        k(f'buffer_load_ushort {v(3)}, {v(2)}, s[8:11], 0 offen')
        k('s_waitcnt vmcnt(0)')
        k(f'v_lshlrev_b32 {v(3)}, 16, {v(3)}')
        k(f'v_mul_f32 {v(4)}, {f32hex(-1.4426950408889634)}, {v(3)}')
        k(f'v_exp_f32 {v(4)}, {v(4)}')
        k.nop(1)
        k(f'v_add_f32 {v(4)}, 1.0, {v(4)}')
        k(f'v_rcp_f32 {v(4)}, {v(4)}')
        k.nop(1)
        k(f'v_mul_f32 {v(4)}, {v(4)}, {v(3)}')
        round_bf16(k, 4)
        k(f'v_lshlrev_b32 {v(2)}, 2, {v(1)}')
        k(f'ds_write_b32 {v(2)}, {v(4)}')
    k('s_waitcnt lgkmcnt(0)')
    k('s_barrier')
    k('v_and_b32 v1, 63, v0')
    k('v_lshrrev_b32 v2, 6, v0')
    k('v_and_b32 v3, 15, v1')
    k('v_lshrrev_b32 v4, 4, v1')
    k('v_mul_u32_u24 v5, 160, v2')
    k('v_add_u32 v5, v5, v4')
    k('v_lshlrev_b32 v6, 2, v5')
    k('s_movk_i32 s20, 7680')
    k('v_mul_lo_u32 v5, v5, s20')
    k('v_lshlrev_b32 v3, 4, v3')
    k('v_add_u32 v5, v5, v3')
    k('s_lshl_b32 s21, s2, 8')
    k('v_add_u32 v5, s21, v5')
    for i in range(40):
        k(f's_mov_b32 s20, {i*4*7680}')
        k(f'buffer_load_dwordx4 {v(32+4*i,4)}, v5, s[12:15], s20 offen')
    for i in range(40):
        k(f'ds_read_b32 {v(192+i)}, v6 offset:{i*16}')
    for j in range(8):
        k(f'v_mov_b32 {v(8+j)}, 0')
    k('s_waitcnt lgkmcnt(0)')
    for i in range(40):
        k(f's_waitcnt vmcnt({39-i})')
        for d in range(4):
            r = 32 + 4*i + d
            k(f'v_lshlrev_b32 v16, 16, {v(r)}')
            k(f'v_and_b32 v17, 0xffff0000, {v(r)}')
            k(f'v_fmac_f32 {v(8+2*d)}, {v(192+i)}, v16')
            k(f'v_fmac_f32 {v(9+2*d)}, {v(192+i)}, v17')
    k('v_lshlrev_b32 v1, 5, v0')
    k('ds_write_b128 v1, v[8:11] offset:4096')
    k('ds_write_b128 v1, v[12:15] offset:4112')
    k('s_waitcnt lgkmcnt(0)')
    k('s_barrier')
    k('v_readfirstlane_b32 s22, v0')
    k.nop(4)
    k('s_cmp_ge_u32 s22, 128')
    k(f's_cbranch_scc1 {done}')
    k('v_lshrrev_b32 v1, 3, v0')
    k('v_and_b32 v2, 7, v0')
    k('v_lshlrev_b32 v1, 5, v1')
    k('v_lshlrev_b32 v2, 2, v2')
    k('v_add_u32 v1, v1, v2')
    for q in range(16):
        k(f'ds_read_b32 {v(32+q)}, v1 offset:{4096 + q*512}')
    k('s_waitcnt lgkmcnt(0)')
    for q in range(1, 16):
        k(f'v_add_f32 v32, v32, {v(32+q)}')
    round_bf16(k, 32)
    lab = k.newlabel('noadd')
    lab2 = k.newlabel('add')
    k('s_mul_i32 s23, s2, 52429')
    k('s_lshr_b32 s23, s23, 18')
    k('s_cmp_eq_u32 s23, 1')
    k(f's_cbranch_scc1 {lab2}')
    k('s_cmp_eq_u32 s23, 4')
    k(f's_cbranch_scc0 {lab}')
    k.label(lab2)
    k('v_add_f32 v32, 1.0, v32')
    round_bf16(k, 32)
    k.label(lab)
    k('s_lshl_b32 s21, s2, 9')
    k('v_lshlrev_b32 v1, 2, v0')
    k('v_add_u32 v1, s21, v1')
    k('buffer_store_dword v32, v1, s[16:19], 0 offen')
    k.label(done)
    return k

def k_ln(name, src, dst_off, shift_chunk, scale_chunk, zero=False):
    k = Kern(name, vgpr=64, sgpr=64)
    done = k.newlabel('done')
    k('s_cmp_ge_u32 s2, 512')
    k(f's_cbranch_scc1 {done}')
    if src[0] == 'arg':
        load_srd(k, src[1], 8)
    else:
        load_srd(k, 'ws', 8, off=src[1], size=2048*640*2)
    load_srd(k, 'ws', 12, off=WS['MOD'], size=3840*4)
    load_srd(k, 'ws', 16, off=dst_off, size=2048*640*2)
    if zero:
        load_srd(k, 'ws', 20, off=WS['CNT'], size=512*256)
        k('s_lshl_b32 s24, s2, 8')
        k('v_lshlrev_b32 v1, 2, v0')
        k('v_add_u32 v1, s24, v1')
        k('v_mov_b32 v4, 0')
        k('v_cmp_gt_u32 vcc, 64, v0')
        k('s_and_saveexec_b64 s[26:27], vcc')
        k('buffer_store_dword v4, v1, s[20:23], 0 offen')
        k('s_mov_b64 exec, s[26:27]')
        load_srd(k, 'ws', 20, off=WS['XACC'], size=2048*640*4)
        k('s_mul_i32 s24, s2, 10240')
        k('v_lshlrev_b32 v1, 4, v0')
        k('v_add_u32 v1, s24, v1')
        k('v_mov_b32 v4, 0'); k('v_mov_b32 v5, 0'); k('v_mov_b32 v6, 0'); k('v_mov_b32 v7, 0')
        for i in range(3):
            k(f's_mov_b32 s25, {i*4096}')
            k('buffer_store_dwordx4 v[4:7], v1, s[20:23], s25 offen')
        zn = WS['POISON_END'] - WS['PB']
        load_srd(k, 'ws', 20, off=WS['PB'], size=zn)
        k('s_lshl_b32 s24, s2, 12')
        k('v_lshlrev_b32 v1, 4, v0')
        k('v_add_u32 v1, s24, v1')
        k('v_mov_b32 v4, -1'); k('v_mov_b32 v5, -1'); k('v_mov_b32 v6, -1'); k('v_mov_b32 v7, -1')
        for i in range((zn + 512*4096 - 1)//(512*4096)):
            k(f's_mov_b32 s25, {i*512*4096}')
            k('buffer_store_dwordx4 v[4:7], v1, s[20:23], s25 offen')
    k('v_and_b32 v1, 63, v0')
    k('v_lshrrev_b32 v2, 6, v0')
    k('s_lshl_b32 s21, s2, 2')
    k('v_add_u32 v2, s21, v2')
    k('s_movk_i32 s20, 1280')
    k('v_mul_lo_u32 v2, v2, s20')
    k('v_lshlrev_b32 v3, 2, v1')
    k('v_add_u32 v2, v2, v3')
    k('v_lshlrev_b32 v3, 3, v1')
    for i in range(5):
        k(f'buffer_load_dword {v(8+i)}, v2, s[8:11], 0 offen offset:{256*i}')
    k('s_mov_b32 s23, %d' % (scale_chunk*2560))
    for i in range(5):
        k(f'buffer_load_dwordx2 {v(32+2*i,2)}, v3, s[12:15], s23 offen offset:{512*i}')
    k('s_mov_b32 s22, %d' % (shift_chunk*2560))
    for i in range(5):
        k(f'buffer_load_dwordx2 {v(44+2*i,2)}, v3, s[12:15], s22 offen offset:{512*i}')
    k('s_waitcnt vmcnt(10)')
    for i in range(5):
        k(f'v_lshlrev_b32 {v(16+2*i)}, 16, {v(8+i)}')
        k(f'v_and_b32 {v(17+2*i)}, 0xffff0000, {v(8+i)}')
    k('v_add_f32 v4, v16, v17')
    for j in range(2, 10):
        k(f'v_add_f32 v4, v4, {v(16+j)}')
    wave_allreduce(k, 4, 5, 'add')
    k(f'v_mul_f32 v4, {f32hex(1.0/640)}, v4')
    k('v_mov_b32 v6, 0')
    for j in range(10):
        k(f'v_sub_f32 v7, {v(16+j)}, v4')
        k('v_fmac_f32 v6, v7, v7')
    wave_allreduce(k, 6, 5, 'add')
    k(f'v_mul_f32 v6, {f32hex(1.0/640)}, v6')
    round_bf16(k, 4)
    round_bf16(k, 6)
    k(f'v_add_f32 v6, {f32hex(1e-5)}, v6')
    round_bf16(k, 6)
    k('v_sqrt_f32 v6, v6')
    k.nop(1)
    round_bf16(k, 6)
    k('v_rcp_f32 v6, v6')
    k.nop(1)
    k('s_waitcnt vmcnt(0)')
    for j in range(10):
        r = 16 + j
        k(f'v_sub_f32 {v(r)}, {v(r)}, v4')
        round_bf16(k, r)
        k(f'v_mul_f32 {v(r)}, {v(r)}, v6')
        round_bf16(k, r)
        k(f'v_mul_f32 {v(r)}, {v(r)}, {v(32+j)}')
        round_bf16(k, r)
        k(f'v_add_f32 {v(r)}, {v(r)}, {v(44+j)}')
    for i in range(5):
        k(f'v_cvt_pk_bf16_f32 {v(8+i)}, {v(16+2*i)}, {v(17+2*i)}')
    for i in range(5):
        k(f'buffer_store_dword {v(8+i)}, v2, s[16:19], 0 offen offset:{256*i}')
    k.label(done)
    return k

from chain5 import chain_kernel
from attn import attn_kernel
from gemm import gemm_kernel, bsrc_plain, bsrc_pair
HEADER = open(f'cdna_kernels/{NAME}.s.ref').read().split('; Override launch')[0]

def main():
    kerns = []; launches = []
    km = k_mod(); kerns.append(km); launches.append((km.name, (30,1,1), (256,1,1), 12288))
    k1 = k_ln('ln1_kernel', ('arg', 'A_x'), WS['H1'], 0, 1, zero=True); kerns.append(k1); launches.append((k1.name, (512,1,1), (256,1,1), 0))
    def add(kk, grid=None, block=256, lds=None):
        kerns.append(kk); launches.append((kk.name, (grid or kk.grid,1,1), (block,1,1), kk.lds if lds is None else lds))
    if os.environ.get('MULTI'):
        add(gemm_kernel('gq_kernel', 2048, 48, 640, 128, WS['H1'], 1280, bsrc_plain('Wq', 12288), dict(kind='store', ldc=12288, dst_off=WS['Q'])))
        add(gemm_kernel('gk_kernel', 2048, 48, 640, 128, WS['H1'], 1280, bsrc_plain('Wk', 12288), dict(kind='store', ldc=12288, dst_off=WS['K'])))
        add(gemm_kernel('gv_kernel', 2048, 48, 640, 128, WS['H1'], 1280, bsrc_plain('Wv', 12288), dict(kind='vt')))
        add(chain_kernel(stamps=('STAMPS' in os.environ)))
        add(attn_kernel())
        add(gemm_kernel('go_kernel', 2048, 5, 6144, 64, WS['O'], 12288, bsrc_plain('Wo', 1280), dict(kind='res', ldc=1280, dst_off=WS['X1'], res_arg='A_x', gate_chunk=2), NBUF=4, tile_map='plain'))
        k2 = k_ln('ln2_kernel', ('ws', WS['X1']), WS['H2'], 3, 4); kerns.append(k2); launches.append((k2.name, (512,1,1), (256,1,1), 0))
        add(gemm_kernel('f1_kernel', 2048, 24, 640, 128, WS['H2'], 1280, bsrc_pair('w1', 'w3', 3072), dict(kind='swiglu', ldc=3072, dst_off=WS['G'])))
        add(gemm_kernel('f2_kernel', 2048, 5, 1536, 64, WS['G'], 3072, bsrc_plain('w2', 1280), dict(kind='res', ldc=1280, dst_arg='out', res_off=WS['X1'], gate_chunk=5), NBUF=4, tile_map='plain'))
    else:
        from mega import mega_kernel
        add(mega_kernel(stamps=('STAMPS' in os.environ)))
    for kk in kerns:
        for pr in sorted(set(lint(kk)))[:12]: print('LINT', pr)
    txt = build_file(HEADER, launches, kerns)
    outp = sys.argv[1] if len(sys.argv) > 1 else f'cdna_kernels/{NAME}.s'
    open(outp, 'w').write(txt)
    print('wrote', outp, len(txt))

if __name__ == '__main__':
    main()
```
